```python
import torch

def _softmax(x, axis=-1):
    return torch.softmax(x, dim=axis)
def _gelu(x):
    return torch.nn.functional.gelu(x, approximate="tanh")
def _silu(x):
    return torch.nn.functional.silu(x)
def _sigmoid(x):
    return torch.sigmoid(x)
def _layernorm(x, axis=-1, eps=1e-5):
    m = x.mean(dim=axis, keepdim=True)
    v = x.var(dim=axis, keepdim=True, unbiased=False)
    return (x - m) / torch.sqrt(v + eps)
def _scatter_add(tgt, idx, src, axis=0):
    return tgt.clone().index_add_(axis, idx, src)
def _segment_sum(src, seg, n):
    out = torch.zeros((n,) + src.shape[1:], dtype=src.dtype)
    return out.index_add_(0, seg, src)
def _pad(x, pw):
    flat = tuple(v for pair in reversed(pw) for v in pair)
    return torch.nn.functional.pad(x, flat)

kernel_name = 'interleave_layers__ssm_conv_h3__mixer_s_mlp__prompt'

def setup_inputs():

    _w = (lambda a: (lambda t: t.to(torch.bfloat16) if t.is_floating_point() else t)(torch.as_tensor(a)))
    def _A_setup():
        B, S, D = 1, 2048, 512
        ks = 4
        return {
            "q": _w((lambda *s: torch.randn(*s, dtype=torch.bfloat16) * 0.05)(B, S, D)),
            "k": _w((lambda *s: torch.randn(*s, dtype=torch.bfloat16) * 0.8)(B, S, D)),
            "v": _w((lambda *s: torch.randn(*s, dtype=torch.bfloat16) * 0.8)(B, S, D)),
            "shift_k": _w((lambda *s: torch.randn(*s, dtype=torch.bfloat16) * 0.8)(D, ks) * 0.5),
            "ssm_k": _w((lambda *s: torch.randn(*s, dtype=torch.bfloat16) * 0.8)(D, S) * (1.0 / S ** 0.5)),
            "ssm_D": _w((lambda *s: torch.randn(*s, dtype=torch.bfloat16) * 0.8)(D)),
        }
    _A_in = _A_setup()

    def _B_setup():
        B, S, D, F = 1, 2048, 512, 1792
        return {
            "x":  _w((lambda *s: torch.randn(*s, dtype=torch.bfloat16) * 0.05)(B, S, D)),
            "w1": _w((lambda *s: torch.randn(*s, dtype=torch.bfloat16) * 3.2)(D, D) * (D ** -0.5)),
            "w2": _w((lambda *s: torch.randn(*s, dtype=torch.bfloat16) * 3.2)(D, D) * (D ** -0.5)),
            "w3": _w((lambda *s: torch.randn(*s, dtype=torch.bfloat16) * 3.2)(D, F) * (D ** -0.5)),
            "w4": _w((lambda *s: torch.randn(*s, dtype=torch.bfloat16) * 3.2)(F, D) * (F ** -0.5)),
        }
    _B_in = _B_setup()

    return {
        "A_q": _A_in["q"],
        "A_k": _A_in["k"],
        "A_v": _A_in["v"],
        "A_shift_k": _A_in["shift_k"],
        "A_ssm_k": _A_in["ssm_k"],
        "A_ssm_D": _A_in["ssm_D"],
        "B_x": _B_in["x"],
        "B_w1": _B_in["w1"],
        "B_w2": _B_in["w2"],
        "B_w3": _B_in["w3"],
        "B_w4": _B_in["w4"],
    }

def reference(A_q, A_k, A_v, A_shift_k, A_ssm_k, A_ssm_D, B_x, B_w1, B_w2, B_w3, B_w4):
    def _A_ref(q, k, v, shift_k, ssm_k, ssm_D):
        B, S, D = q.shape
        ks = shift_k.shape[-1]
        k_pad = _pad(k, ((0, 0), (ks - 1, 0), (0, 0)))
        k_shift = torch.zeros_like(k)
        for t in range(ks):
            k_shift = k_shift + k_pad[:, t:t + S, :] * shift_k[:, ks - 1 - t][None, None, :]
        kv = k_shift * v
        L = 2 * S
        kv_pad = _pad(kv, ((0, 0), (0, S), (0, 0)))
        kf_pad = _pad(ssm_k, ((0, 0), (0, S)))
        kv_f = (lambda x, axes=(-2,-1): torch.fft.rfft2(x.float(), dim=axes))(kv_pad[:, None, :, :], axes=(1, 2))
        kf_f = (lambda x, axes=(-2,-1): torch.fft.rfft2(x.float(), dim=axes))(kf_pad[:, None, :], axes=(1, 2))
        kf_f = (lambda x, *d: x.permute(*d))(kf_f, 1, 2, 0)
        y_f = kv_f * kf_f[None, :, :, :]
        y = (lambda x, s, axes=(-2,-1): torch.fft.irfft2(x, s=s, dim=axes).to(torch.bfloat16))(y_f, (1, L), axes=(1, 2))[:, 0, :S, :]
        y = y + kv * ssm_D[None, None, :]
        return q * y

    def _B_ref(x, w1, w2, w3, w4):
        B, S, D = x.shape
        h = _gelu(_layernorm(x, axis=-1) @ w1)
        c = D // 4
        g0 = _pad(h[:, :, 0*c:1*c], ((0, 0), (1, 0), (0, 0)))[:, :S, :]
        g1 = _pad(h[:, :, 1*c:2*c], ((0, 0), (0, 1), (0, 0)))[:, 1:, :]
        g2 = _pad(h[:, :, 2*c:3*c], ((0, 0), (2, 0), (0, 0)))[:, :S, :]
        g3 = _pad(h[:, :, 3*c:   ], ((0, 0), (0, 2), (0, 0)))[:, 2:, :]
        hs = torch.concatenate([g0, g1, g2, g3], axis=-1) @ w2
        x1 = x + hs
        h2 = _gelu(_layernorm(x1, axis=-1) @ w3) @ w4
        return x1 + h2

    x = A_q
    x = x + _A_ref(_layernorm(x, axis=-1), A_k, A_v, A_shift_k, A_ssm_k, A_ssm_D)
    x = x + _B_ref(_layernorm(x, axis=-1), B_w1, B_w2, B_w3, B_w4)
    x = x + _A_ref(_layernorm(x, axis=-1), A_k, A_v, A_shift_k, A_ssm_k, A_ssm_D)
    x = x + _B_ref(_layernorm(x, axis=-1), B_w1, B_w2, B_w3, B_w4)
    return x
```

```python
import re

_REG = re.compile(r'(?<![\w.])([vas])\[(\d+):(\d+)\]|(?<![\w.\[])([vas])(\d+)(?![\w\]])|(?<![\w.])(vcc|exec|m0|scc)(?![\w])')
TRANS = ('v_exp_f32', 'v_log_f32', 'v_rcp_f32', 'v_rsq_f32', 'v_sqrt_f32', 'v_sin_f32', 'v_cos_f32')


def regs_of(op):
    out = set()
    for m in _REG.finditer(op):
        if m.group(1):
            for i in range(int(m.group(2)), int(m.group(3)) + 1):
                out.add(m.group(1) + str(i))
        elif m.group(4):
            out.add(m.group(4) + m.group(5))
        else:
            out.add(m.group(6))
    return out


class Ins:
    __slots__ = ('text', 'mn', 'ops', 'wr', 'rd', 'kind', 'tags', 'srcc', 'srcab', 'passes', 'wide_store')

    def __init__(self, text):
        self.text = text
        code, _, cmt = text.partition(';')
        self.tags = set(re.findall(r'@(\w+)', cmt))
        code = code.strip()
        self.wr, self.rd = set(), set()
        self.srcc, self.srcab, self.passes, self.wide_store = set(), set(), 0, set()
        if code.startswith('.touch'):
            self.mn, self.ops, self.kind = '.touch', [], 'vmem'
            self.rd = regs_of(code[6:]); self.tags.add('pseudo')
            return
        if not code or code.endswith(':') or code.startswith('.'):
            self.mn, self.ops, self.kind = code, [], 'label' if code.endswith(':') else 'none'
            return
        parts = code.split(None, 1)
        mn = self.mn = parts[0]
        rest = parts[1] if len(parts) > 1 else ''
        rest_nomod = re.sub(r'\b(op_sel|op_sel_hi|neg_lo|neg_hi):\[[^\]]*\]', '', rest)
        ops = self.ops = [o.strip() for o in rest_nomod.split(',')]
        R = [regs_of(o) for o in ops]
        allr = set().union(*R) if R else set()
        if mn.startswith('v_mfma'):
            self.kind = 'mfma'
            self.wr = R[0]; self.srcab = R[1] | R[2]; self.srcc = R[3]; self.rd = self.srcab | self.srcc
            self.passes = 8 if '32x32' in mn else 4
        elif mn.startswith(('global_load', 'buffer_load')):
            self.kind = 'vmem'
            if '_lds_' in mn or re.search(r'\blds\b', rest):
                self.rd = allr | {'m0'}; self.tags.add('dma')
            else:
                self.wr = R[0]; self.rd = set().union(*R[1:])
        elif mn.startswith(('global_store', 'buffer_store')):
            self.kind = 'vmem'; self.rd = allr
            if mn.endswith(('x3', 'x4')):
                self.wide_store = R[1] if mn.startswith('global') else R[0]
        elif mn.startswith(('global_atomic', 'buffer_atomic')):
            self.kind = 'vmem'
            if 'sc0' in rest and mn.startswith('global'):
                self.wr = R[0]; self.rd = set().union(*R[1:])
            else:
                self.rd = allr
        elif mn.startswith(('buffer_inv', 'buffer_wbl2')):
            self.kind = 'vmem'
        elif mn.startswith('ds_'):
            self.kind = 'ds'
            if mn.startswith(('ds_read', 'ds_bpermute', 'ds_permute', 'ds_swizzle')) or '_rtn' in mn:
                self.wr = R[0]; self.rd = set().union(*R[1:])
            else:
                self.rd = allr
        elif mn.startswith(('s_load', 's_buffer_load', 's_memtime', 's_memrealtime')):
            self.kind = 'smem'; self.wr = R[0]; self.rd = set().union(*R[1:]) if len(R) > 1 else set()
        elif mn.startswith('v_'):
            self.kind = 'valu'
            if mn.startswith('v_permlane') and 'swap' in mn:
                self.wr = allr; self.rd = allr
            elif mn.startswith('v_nop'):
                pass
            else:
                self.wr = set(R[0]); self.rd = set().union(*R[1:]) if len(R) > 1 else set()
                if mn.startswith(('v_fmac', 'v_dot2c', 'v_writelane')) or '_dpp' in mn or '_sdwa' in mn:
                    self.rd |= R[0]
                if '_co_' in mn:
                    self.wr |= R[1]
                if mn.startswith('v_cmpx'):
                    self.wr.add('exec')
        elif mn.startswith('s_'):
            self.kind = 'salu'
            if mn.startswith(('s_cmp', 's_cbranch', 's_branch', 's_waitcnt', 's_nop', 's_barrier', 's_endpgm', 's_sleep', 's_setprio', 's_setpc', 's_bitcmp')):
                self.rd = allr
            else:
                self.wr = set(R[0]); self.rd = set().union(*R[1:]) if len(R) > 1 else set()
                if 'saveexec' in mn:
                    self.wr.add('exec')
        else:
            raise ValueError('unknown instr ' + text)


def _isv(r):
    return r[0] in 'va' and r[1:].isdigit()


def _iss(r):
    return (r[0] == 's' and r[1:].isdigit()) or r == 'vcc'


def need_states(p, c):
    n = 0
    ctouch = c.rd | c.wr
    if p.kind == 'valu':
        pv = {r for r in p.wr if _isv(r)}
        ps = {r for r in p.wr if _iss(r)}
        if c.kind == 'mfma' and pv & c.rd: n = max(n, 2)
        if c.kind == 'mfma' and re.search(r'op_sel:\[\d,[\d,]*1', p.text): n = max(n, 1)
        if c.kind == 'valu':
            if (c.mn.startswith('v_permlane') or '_dpp' in c.mn) and pv & c.rd: n = max(n, 2)
            if c.mn.startswith(('v_readlane', 'v_readfirstlane')) and pv & c.rd: n = max(n, 1)
            if p.mn.startswith(TRANS) and pv & c.rd: n = max(n, 1)
            if ps & c.rd: n = max(n, 4 if c.mn.startswith(('v_readlane', 'v_writelane')) else 2)
            if '_sdwa' in p.mn and pv & ctouch: n = max(n, 1)
            if 'exec' in p.wr: n = max(n, 5)
        if c.kind == 'mfma' and 'exec' in p.wr: n = max(n, 4)
        if c.kind == 'vmem' and ps & c.rd: n = max(n, 5)
        if c.kind in ('salu', 'smem') and ps & c.rd: n = max(n, 1)
        if p.mn.startswith(TRANS) and c.kind in ('vmem', 'ds') and pv & c.rd: n = max(n, 1)
    elif p.kind == 'mfma':
        big = p.passes == 8
        if c.kind == 'mfma':
            if p.wr & c.srcab: n = max(n, 12 if big else 8)
            if p.wr & c.srcc and not (p.wr == c.srcc and p.passes == c.passes): n = max(n, 10 if big else 6)
            if p.wr & c.wr and not (p.wr == c.wr and p.passes == c.passes): n = max(n, 12 if big else 8)
        elif c.kind in ('valu', 'vmem', 'ds'):
            if p.wr & ctouch: n = max(n, 12 if big else 8)
            if c.kind == 'valu' and p.srcc & c.wr: n = max(n, 7 if big else 3)
    elif p.kind == 'salu':
        if 'm0' in p.wr and 'dma' in c.tags: n = max(n, 1)
    elif p.kind == 'vmem':
        if p.wide_store & c.wr: n = max(n, 2)
    return n


class Asm:
    def __init__(self):
        self.items = []
        self.kernels = []
        self._lbl = 0

    def __call__(self, s, tag=None):
        for l in s.split('\n'):
            l = l.strip()
            if not l: continue
            if tag and not l.endswith(':'):
                l = l + (' ' if ';' in l else ' ; ') + '@' + tag
            self.items.append(Ins(l))

    def label(self, base='L'):
        self._lbl += 1
        return f'{base}_{self._lbl}'

    def begin_kernel(self, name):
        self(f'.globl {name}\n.p2align 8\n.type {name},@function\n{name}:')
        self.items[-1].tags.add('reset')

    def end_kernel(self, name, vgpr, sgpr=102, agpr=0):
        accum = (vgpr + 3) // 4 * 4
        self.kernels.append((name, accum + agpr if agpr else vgpr, sgpr, accum))

    def _waitcnt(self):
        out = []
        vm, lg = [], []
        saved = None
        run = 0

        def younger(q, idx):
            return sum(1 for e in q[idx + 1:] if e[1] or (saved is not None and e[3] == run))

        def trim(q, n):
            keep, cnt = [], 0
            for e in reversed(q):
                if cnt >= n: break
                keep.append(e)
                if e[1] or (saved is not None and e[3] == run): cnt += 1
            return keep[::-1]
        for ins in self.items:
            if 'reset' in ins.tags:
                vm, lg, saved = [], [], None
            if ins.kind in ('none', 'label'):
                out.append(ins); continue
            nc = 'nocount' in ins.tags
            if nc and saved is None:
                run += 1
                saved = (list(vm), list(lg))
            elif not nc and saved is not None:
                vm = saved[0] + [e for e in vm if e[3] == run]
                lg = saved[1] + [e for e in lg if e[3] == run]
                saved = None
            if ins.mn == 's_waitcnt':
                m = re.search(r'vmcnt\((\d+)\)', ins.text)
                if m: vm = trim(vm, int(m.group(1)))
                m = re.search(r'lgkmcnt\((\d+)\)', ins.text)
                if m: lg = trim(lg, int(m.group(1)))
                out.append(ins); continue
            touch = ins.rd | ins.wr
            wv = wl = None
            for i in range(len(vm) - 1, -1, -1):
                if vm[i][0] & touch:
                    wv = min(63, younger(vm, i)); vm = vm[i + 1:]; break
            for i in range(len(lg) - 1, -1, -1):
                if lg[i][0] & touch:
                    if any(e[2] for e in lg):
                        wl = 0; lg = []
                    else:
                        wl = min(15, younger(lg, i)); lg = lg[i + 1:]
                    break
            if wv is not None or wl is not None:
                t = 's_waitcnt' + (f' vmcnt({wv})' if wv is not None else '') + (f' lgkmcnt({wl})' if wl is not None else '')
                w = Ins(t)
                if nc: w.tags.add('nocount')
                out.append(w)
            if 'pseudo' in ins.tags:
                pass
            elif ins.kind == 'vmem':
                vm.append((set(ins.wr), not nc, False, run if nc else -1))
            elif ins.kind == 'ds':
                lg.append((set(ins.wr), not nc, False, run if nc else -1))
            elif ins.kind == 'smem':
                lg.append((set(ins.wr), not nc, True, run if nc else -1))
            out.append(ins)
        self.items = out

    def _hazards(self):
        out = []
        hist = []
        for ins in self.items:
            if 'reset' in ins.tags:
                hist = []
            if ins.kind in ('none', 'label'):
                out.append(ins); continue
            need = 0
            dist = 0
            for p in reversed(hist):
                n = need_states(p, ins)
                if n > dist: need = max(need, n - dist)
                if 'nocount' not in p.tags or 'nocount' in ins.tags:
                    dist += (int(p.ops[0], 0) + 1) if p.mn == 's_nop' else 1
                if dist >= 20: break
            while need > 0:
                k = min(need, 16)
                nop = Ins(f's_nop {k - 1}')
                if 'nocount' in ins.tags: nop.tags.add('nocount')
                out.append(nop); hist.append(nop); need -= k
            if 'pseudo' in ins.tags: continue
            out.append(ins); hist.append(ins)
            if len(hist) > 64: hist = hist[-64:]
        self.items = out

    def text(self, header_lines):
        self._waitcnt()
        self._hazards()
        out = list(header_lines)
        out.append('.amdgcn_target "amdgcn-amd-amdhsa--gfx950"')
        out.append('.text')
        for i in self.items:
            t = re.sub(r'\s*;.*$', '', i.text)
            out.append(t if i.kind in ('label', 'none') else '    ' + t)
        out.append('.section .rodata,"a"')
        for name, v, s, a in self.kernels:
            out.append('.p2align 6')
            out.append(f'.amdhsa_kernel {name}')
            out.append(f'  .amdhsa_next_free_vgpr {v}')
            out.append(f'  .amdhsa_next_free_sgpr {s}')
            out.append(f'  .amdhsa_accum_offset {a}')
            out.append('  .amdhsa_group_segment_fixed_size 0')
            out.append('  .amdhsa_kernarg_size 112')
            out.append('  .amdhsa_user_sgpr_count 2')
            out.append('  .amdhsa_user_sgpr_kernarg_segment_ptr 1')
            out.append('  .amdhsa_system_sgpr_workgroup_id_x 1')
            out.append('.end_amdhsa_kernel')
        return '\n'.join(out) + '\n'


def merge(main, side, ratio=None):
    slots = [i for i, s in enumerate(main) if s.startswith('v_mfma')]
    out = []
    n = len(slots); k = 0; done = 0
    for i, s in enumerate(main):
        out.append(s)
        if s.startswith('v_mfma'):
            k += 1
            upto = len(side) * k // n if ratio is None else min(len(side), int(ratio * k))
            out += side[done:upto]; done = max(done, upto)
    out += side[done:]
    return out
```

```python
from layout import *
from asmx import merge

HS_ = 260 * 16
L_H = 0
L_U = 2 * 8 * HS_
U_ = 286 * 16
L_P = L_U + 2 * U_
K0_LDS = L_P + 4 * 8 * 1152


def srd(a, d, ptr, nbytes):
    a(f'''s_mov_b32 s{d}, s{ptr}
    s_mov_b32 s{d+1}, s{ptr+1}
    s_mov_b32 s{d+2}, {nbytes}
    s_mov_b32 s{d+3}, 0x00020000''')


def gen_k0(a, name, opt):
    a.begin_kernel(name)
    END = a.label('k0_end'); TB = a.label('k0_teamB')
    a(f'''
    s_cmp_ge_u32 s2, 256
    s_cbranch_scc1 {END}
    s_load_dwordx8 s[4:11], s[0:1], 0
    s_load_dwordx4 s[12:15], s[0:1], 32
    s_load_dwordx8 s[16:23], s[0:1], 56
    s_load_dwordx4 s[24:27], s[0:1], 96
    v_lshrrev_b32 v1, 6, v0
    v_and_b32 v2, 63, v0            ; lane
    v_readfirstlane_b32 s3, v1      ; wave
    s_and_b32 s40, s2, 7            ; xg
    s_lshr_b32 s41, s2, 3           ; rk
    s_lshl_b32 s42, s40, 6
    s_lshl_b32 s43, s41, 1
    s_add_u32 s42, s42, s43
    s_waitcnt lgkmcnt(0)
    ''')
    srd(a, 36, 26, WS_BYTES)
    a(f'''
    s_cmp_ge_u32 s3, 4
    s_cbranch_scc1 {TB}
    ''')
    srd(a, 28, 6, 2097152)
    srd(a, 32, 8, 2097152)
    a(f'''
    v_and_b32 v3, 7, v2             ; rg
    v_lshrrev_b32 v4, 3, v0
    v_lshlrev_b32 v5, 13, v3
    v_lshl_add_u32 v5, v4, 2, v5
    s_lshl_b32 s44, s41, 16         ; rk*64*1024
    s_lshl_b32 s45, s40, 7
    s_add_u32 s44, s44, s45
    v_add_u32 v5, s44, v5           ; vA
    v_subrev_u32 v6, 0xc00, v5
    s_movk_i32 s46, 0x1000
    ''')
    K = 16
    for i in range(3):
        a(f'buffer_load_dword v{K+i}, v6, s[28:31], 0 offen offset:{i*1024}')
    for i in range(8):
        so = '0' if i < 4 else 's46'
        a(f'buffer_load_dword v{K+3+i}, v5, s[28:31], {so} offen offset:{(i%4)*1024}')
        a(f'buffer_load_dword v{K+11+i}, v5, s[32:35], {so} offen offset:{(i%4)*1024}')
    a(f'''
    v_lshlrev_b32 v7, 4, v4         ; cp*16
    s_lshl_b32 s45, s40, 9          ; xg*64*8
    v_add_u32 v7, s45, v7
    global_load_dwordx4 v[36:39], v7, s[10:11]
    ''')
    a(f'''
    s_lshr_b32 s47, s3, 1
    s_add_u32 s48, s42, s47
    s_lshl_b32 s48, s48, 1
    v_mov_b32 v8, s48
    global_load_ushort v9, v8, s[14:15]
    ''')
    a(f'''
    v_lshlrev_b32 v10, 13, v4       ; cp*2*4096
    v_lshlrev_b32 v11, 4, v3
    v_sub_u32 v10, v10, v11
    s_lshl_b32 s45, s40, 18         ; xg*64*4096
    s_lshl_b32 s49, s41, 7
    s_sub_u32 s45, s45, s49
    s_add_u32 s45, s45, {UR + 255*16}
    v_add_u32 v10, s45, v10
    s_mov_b32 s50, 0xffff0000
    ''')
    for j in range(4):
        for c in range(2):
            src = 36 + c * 2 + j // 2
            if j % 2 == 0: a(f'v_lshlrev_b32 v{40+2*j+c}, 16, v{src}')
            else: a(f'v_and_b32 v{40+2*j+c}, s50, v{src}')
    KF = 48
    for i in range(11):
        a(f'v_lshlrev_b32 v{KF+2*i}, 16, v{K+i}\nv_and_b32 v{KF+2*i+1}, s50, v{K+i}')
    for i in range(8):
        a(f'v_lshlrev_b32 v{70+2*i}, 16, v{K+11+i}\nv_and_b32 v{71+2*i}, s50, v{K+11+i}')
    U = 86
    for t in range(8):
        d = f'v[{U+2*t}:{U+2*t+1}]'
        kk = lambda r: f'v[{KF+2*(r+3)}:{KF+2*(r+3)+1}]'
        a(f'v_pk_mul_f32 {d}, {kk(t-3)}, v[46:47]')
        for j in (2, 1, 0):
            a(f'v_pk_fma_f32 {d}, {kk(t-j)}, v[{40+2*j}:{41+2*j}], {d}')
    for t in range(8):
        d = f'v[{U+2*t}:{U+2*t+1}]'
        a(f'v_pk_mul_f32 {d}, {d}, v[{70+2*t}:{71+2*t}]')
    for c in range(2):
        for dd in range(4):
            a(f'v_cvt_pk_bf16_f32 v{104+4*c+dd}, v{U+2*(7-2*dd)+c}, v{U+2*(6-2*dd)+c}')
    a(f'''
    buffer_store_dwordx4 v[104:107], v10, s[36:39], 0 offen sc1
    buffer_store_dwordx4 v[108:111], v10, s[36:39], s46 offen sc1
    ''')
    a(f'''
    v_and_b32 v3, 15, v2            ; b / a
    v_lshrrev_b32 v4, 4, v2         ; q4
    v_and_b32 v5, 7, v3
    v_mul_u32_u24 v5, {HS_}, v5
    v_lshrrev_b32 v6, 3, v3
    v_add_u32 v6, v6, v4
    v_lshl_add_u32 v5, v6, 4, v5
    s_and_b32 s51, s3, 1            ; half
    s_mul_i32 s52, s47, {8*HS_}
    s_lshl_b32 s53, s51, 8
    s_add_u32 s52, s52, s53
    v_add_u32 v12, s52, v5          ; vAddrA
    v_lshlrev_b32 v6, 1, v3
    v_sub_u32 v6, v4, v6
    v_lshlrev_b32 v6, 4, v6
    s_mul_i32 s52, s47, {U_}
    s_add_u32 s52, s52, s53
    s_add_u32 s52, s52, {L_U + 30*16}
    v_add_u32 v13, s52, v6          ; vAddrB
    v_lshlrev_b32 v6, 3, v4
    v_add_u32 v6, v6, v3
    v_sub_u32 v6, 15, v6
    v_and_b32 v7, 1, v6
    v_lshlrev_b32 v7, 4, v7
    v_lshlrev_b32 v9, v7, v9        ; D << (16*(idx&1))
    v_ashrrev_i32 v6, 1, v6
    ''')
    for dd in range(4):
        a(f'v_cmp_eq_u32 vcc, {dd}, v6\nv_cndmask_b32 v{240+dd}, 0, v9, vcc')
    a(f'''
    v_mul_u32_u24 v14, 288, v4
    v_lshl_add_u32 v14, v3, 4, v14
    s_mul_i32 s52, s3, {8*1152}
    s_add_u32 s52, s52, {L_P}
    v_add_u32 v14, s52, v14
    s_waitcnt vmcnt(0)
    s_barrier
    ''')
    W0 = a.label('k0_w0done'); P = a.label('k0_poll')
    a(f'''
    s_cmp_lg_u32 s3, 0
    s_cbranch_scc1 {W0}
    s_lshl_b32 s52, s40, 5
    v_mov_b32 v5, s52
    v_mov_b32 v6, 1
    s_mov_b64 exec, 1
    global_atomic_add v5, v6, s[24:25] sc1
    s_mov_b64 exec, -1
    s_mov_b32 s54, 0
    {P}:
    s_add_u32 s54, s54, 1
    s_cmp_gt_u32 s54, {opt.get('spin', 1000000)}
    s_cbranch_scc1 {P}_x
    global_load_dword v7, v5, s[24:25] sc1
    s_waitcnt vmcnt(0)
    v_cmp_gt_u32 vcc, 32, v7
    s_cbranch_vccnz {P}
    {P}_x:
    v_lshlrev_b32 v5, 4, v2
    s_lshl_b32 s52, s42, 12
    ''')
    for c in range(2):
        a(f's_mov_b32 m0, {L_U + c*U_}')
        if c: a('s_add_u32 s52, s52, 4096')
        for i in range(4):
            a(f'buffer_load_dwordx4 v5, s[36:39], s52 offen offset:{i*1024} sc1 lds')
    a(f'''
    s_waitcnt vmcnt(0)
    {W0}:
    s_barrier
    ''')
    ACC = 16
    FA = [48, 112]
    def loads(rr):
        base = FA[rr % 2]
        out = []
        order = [(0, i) for i in range(8)]
        for i in range(8):
            out.append(f'ds_read_b128 v[{base+4*i}:{base+4*i+3}], v12 offset:{i*512+rr*64}')
            out.append(f'ds_read_b128 v[{base+32+4*i}:{base+32+4*i+3}], v13 offset:{(7-i)*512+rr*64}')
        return out
    def mf(rr):
        base = FA[rr % 2]
        out = []
        pairs = sorted([(q, d) for q in range(8) for d in range(8) if q + d <= 7], key=lambda p: (max(p), p))
        first = set()
        for q, d in pairs:
            T = q + d
            c = f'v[{ACC+4*T}:{ACC+4*T+3}]'
            cin = c
            if rr == 0 and T not in first:
                cin = '0'; first.add(T)
            out.append(f'v_mfma_f32_16x16x32_bf16 {c}, v[{base+4*q}:{base+4*q+3}], v[{base+32+4*d}:{base+32+4*d+3}], {cin}')
        return out
    for l in loads(0): a(l)
    for rr in range(4):
        m = mf(rr)
        if rr < 3:
            m = merge(m, loads(rr + 1), ratio=0.5)
        if rr == 0:
            pass
        for l in m: a(l)
        if rr == 0:
            SK = a.label('k0_noD')
            a(f's_cmp_lg_u32 s51, 0\ns_cbranch_scc1 {SK}')
            for T in range(8):
                c = f'v[{ACC+4*T}:{ACC+4*T+3}]'
                a(f'v_mfma_f32_16x16x32_bf16 {c}, v[240:243], v[{FA[0]+32+4*T}:{FA[0]+32+4*T+3}], {c}', tag='nocount')
            a(f'{SK}:')
    for T in range(8):
        a(f'ds_write_b128 v14, v[{ACC+4*T}:{ACC+4*T+3}] offset:{T*1152}')
    a(f'''
    v_lshrrev_b32 v3, 4, v0         ; a
    v_bfe_u32 v4, v0, 2, 2          ; q4
    v_and_b32 v5, 3, v0
    v_mul_u32_u24 v4, 288, v4
    v_lshl_add_u32 v4, v3, 4, v4
    v_lshl_add_u32 v4, v5, 2, v4
    v_add_u32 v4, {L_P}, v4
    v_lshrrev_b32 v5, 5, v0
    v_lshlrev_b32 v5, 15, v5
    v_and_b32 v6, 31, v0
    v_lshl_add_u32 v5, v6, 4, v5
    s_lshr_b32 s52, s42, 4
    s_lshl_b32 s52, s52, 10
    s_bfe_u32 s53, s42, 0x10002
    s_lshl_b32 s53, s53, 9
    s_add_u32 s52, s52, s53
    s_bfe_u32 s53, s42, 0x10003
    s_lshl_b32 s53, s53, 3
    s_add_u32 s52, s52, s53
    s_and_b32 s53, s42, 3
    s_lshl_b32 s53, s53, 1
    s_add_u32 s52, s52, s53
    s_add_u32 s52, s52, {YP}
    s_waitcnt lgkmcnt(0)
    s_barrier
    ''')
    for T in range(8):
        for w in range(4):
            a(f'ds_read_b32 v{48+4*T+w}, v4 offset:{w*8*1152+T*1152}')
    for T in range(8):
        r = 48 + 4 * T
        a(f'''v_add_f32 v{r}, v{r}, v{r+1}
        v_add_f32 v{r+2}, v{r+2}, v{r+3}
        v_cvt_pk_bf16_f32 v{r}, v{r}, v{r+2}
        buffer_store_dword v{r}, v5, s[36:39], s52 offen
        s_add_u32 s52, s52, {8*32768}''')
    a('s_endpgm')

    a(f'{TB}:')
    a.items[-1].tags.add('reset')
    srd(a, 28, 12, 2097152)
    a(f'''
    s_sub_u32 s3, s3, 4             ; wB
    v_lshlrev_b32 v3, 4, v2         ; lane*16
    s_lshr_b32 s47, s3, 1
    s_and_b32 s51, s3, 1
    s_add_u32 s48, s42, s47
    s_lshl_b32 s48, s48, 12
    s_lshl_b32 s52, s51, 3
    s_add_u32 s52, s52, s48
    s_add_u32 s52, s52, 2           ; (16 + sigma - 15)*2
    s_mul_i32 s53, s3, {4*HS_}
    s_add_u32 s53, s53, {L_H + 32}
    ''')
    for sg in range(4):
        a(f's_add_u32 m0, s53, {sg*HS_}')
        for i in range(4):
            a(f'buffer_load_dwordx4 v3, s[28:31], s52 offen offset:{i*1024} lds')
        if sg < 3: a('s_add_u32 s52, s52, 2')
    a(f'''
    v_and_b32 v4, 7, v2             ; e
    v_lshlrev_b32 v5, 1, v4
    buffer_load_ushort v6, v5, s[28:31], s48 offen
    ''')
    a(f'''
    v_subrev_u32 v7, 256, v0        ; tB
    v_lshrrev_b32 v8, 3, v7         ; sigma (0..31)
    v_lshrrev_b32 v9, 1, v8
    v_lshlrev_b32 v9, 5, v9
    v_and_b32 v10, 1, v8
    v_lshl_add_u32 v9, v10, 3, v9
    v_lshl_add_u32 v9, v4, 10, v9
    s_lshl_b32 s54, s2, 13
    v_add_u32 v9, s54, v9
    global_load_dwordx2 v[16:17], v9, s[4:5]
    global_load_dwordx2 v[18:19], v9, s[4:5] offset:16
    global_load_dwordx2 v[20:21], v9, s[4:5] offset:512
    global_load_dwordx2 v[22:23], v9, s[4:5] offset:528
    ''')
    def slot(n, vd, vdst):
        R = 68 + 4 * n
        a(f'''
        s_mov_b32 s{R}, s56
        s_mov_b32 s{R+1}, s57
        s_mov_b32 s{R+2}, s64
        s_mov_b32 s{R+3}, 0x00020000
        s_mul_i32 s80, s60, 4682
        s_lshr_b32 s80, s80, 16
        s_mul_i32 s81, s80, 14
        s_sub_u32 s81, s60, s81
        s_lshr_b32 s82, s60, 2
        s_and_b32 s83, s60, 3
        s_cmp_lg_u32 s61, 0
        s_cselect_b32 s80, s80, s82     ; o
        s_cselect_b32 s81, s81, s83     ; g
        s_mov_b32 s84, 1024
        s_cmov_b32 s84, 3584   ; stride
        s_cselect_b32 s85, 3, 4         ; sh
        s_cselect_b32 s86, 16384, s62   ; mul
        s_cselect_b32 s87, 7, 15        ; msk
        s_lshr_b32 s82, s80, 1          ; ks
        s_and_b32 s83, s80, 1           ; q2
        s_lshl_b32 s88, s82, 4
        s_lshl_b32 s89, s83, 2
        s_add_u32 s88, s88, s89
        s_mul_i32 s88, s88, s84
        s_lshl_b32 s89, s81, 8
        s_add_u32 s88, s88, s89
        v_lshlrev_b32 v11, 2, v2
        ''')
        for e in range(8):
            a(f'buffer_load_dword v{vd+e}, v11, s[{R}:{R+3}], s88 offen')
            if e == 3: a('s_mul_i32 s89, s84, 5\ns_add_u32 s88, s88, s89')
            elif e < 7: a('s_add_u32 s88, s88, s84')
        a(f'''
        s_mul_i32 s88, s81, s62
        s_lshl_b32 s88, s88, 2
        s_lshl_b32 s89, s82, 10
        s_add_u32 s88, s88, s89         ; dst_p
        s_lshl_b32 s89, s81, 17
        s_lshr_b32 s90, s82, 1
        s_lshl_b32 s90, s90, 10
        s_add_u32 s89, s89, s90
        s_and_b32 s90, s82, 1
        s_lshl_b32 s90, s90, 8
        s_add_u32 s89, s89, s90         ; dst_3
        s_cmp_lg_u32 s61, 0
        s_cselect_b32 s88, s89, s88
        s_lshl_b32 s89, s83, 9
        s_add_u32 s88, s88, s89
        s_add_u32 s88, s88, s63
        v_lshrrev_b32 v11, s85, v2
        v_mul_lo_u32 v11, v11, s86
        v_and_b32 v12, s87, v2
        v_lshl_add_u32 v11, v12, 5, v11
        v_add_u32 v{vdst}, s88, v11
        ''')
    a(f'''
    s_mul_i32 s65, s2, 3
    s_add_u32 s65, s65, s3
    s_cmp_lt_u32 s3, 3
    s_cselect_b32 s60, s65, s2
    s_cselect_b64 s[56:57], s[22:23], s[16:17]
    s_mov_b32 s62, {32*1024}
    s_cmov_b32 s62, {112*1024}
    s_mov_b32 s63, {WP1}
    s_cmov_b32 s63, {WP4}
    s_mov_b32 s64, {512*1024}
    s_cmov_b32 s64, {1792*1024}
    s_mov_b32 s61, 0
    ''')
    slot(0, 24, 13)
    a(f'''
    s_cmp_lt_u32 s3, 3
    s_cselect_b64 s[56:57], s[20:21], s[18:19]
    s_cselect_b32 s61, 1, 0
    s_mov_b32 s63, {WP2}
    s_cmov_b32 s63, {WP3}
    ''')
    slot(1, 32, 14)
    NC = a.label('k0_noC')
    a(f'''
    v_mov_b32 v15, {OOB}
    s_cmp_lg_u32 s3, 0
    s_cbranch_scc1 {NC}
    ''')
    n0 = len(a.items)
    a(f'''
    s_lshr_b32 s60, s2, 1
    s_add_u32 s60, s60, 768
    s_and_b32 s61, s2, 1
    s_cselect_b64 s[56:57], s[20:21], s[22:23]
    s_mov_b32 s63, {WP4}
    s_cmov_b32 s63, {WP3}
    ''')
    slot(2, 40, 15)
    for i in a.items[n0:]: i.tags.add('nocount')
    a(f'{NC}:')
    a(f'''
    v_mov_b32 v48, 0
    v_mov_b32 v49, 0
    v_mov_b32 v50, 0
    v_mov_b32 v51, 0
    v_and_b32 v11, 31, v2
    v_min_u32 v11, 29, v11
    v_lshlrev_b32 v11, 4, v11
    v_lshrrev_b32 v12, 5, v2
    v_mul_u32_u24 v12, {U_}, v12
    v_add_u32 v11, v11, v12
    v_add_u32 v11, {L_U + 4096}, v11
    ds_write_b128 v11, v[48:51]
    ''')
    a(f'''
    v_and_b32 v11, 15, v2
    v_mul_u32_u24 v11, {HS_}, v11
    ds_write_b128 v11, v[48:51]
    ''')
    NI = a.label('k0_noinit')
    a(f's_cmp_lg_u32 s3, 1\ns_cbranch_scc1 {NI}')
    n0 = len(a.items)
    a(f'''
    s_lshl_b32 s60, s2, 5
    s_add_u32 s60, s60, {FLAGS}
    s_mov_b64 exec, 3
    buffer_store_dwordx4 v[48:51], v3, s[36:39], s60 offen
    s_mov_b64 exec, 0xffff
    s_and_b32 s61, s2, 3
    s_lshl_b32 s61, s61, 2
    v_lshrrev_b32 v11, 2, v2
    v_add_u32 v11, s61, v11         ; sg
    s_bfe_u32 s61, s2, 0x10005
    s_mul_i32 s61, s61, 15
    v_cmp_ne_u32 vcc, s61, v11
    v_cndmask_b32 v52, 0, -1, vcc
    v_cndmask_b32 v53, 0, -1, vcc
    v_cndmask_b32 v54, 0, -1, vcc
    v_cndmask_b32 v55, 0, -1, vcc
    s_lshr_b32 s61, s2, 7
    s_mul_i32 s61, s61, {LSTRIDE}
    s_and_b32 s60, s2, 127
    s_lshl_b32 s60, s60, 8
    s_add_u32 s60, s60, s61
    s_add_u32 s60, s60, {LBASE + SH}
    buffer_store_dwordx4 v[52:55], v3, s[36:39], s60 offen
    s_mov_b64 exec, -1
    ''')
    for i in a.items[n0:]: i.tags.add('nocount')
    a(f'{NI}:')
    a('s_barrier')
    a(f'''
    v_lshrrev_b32 v11, 3, v2
    v_cmp_le_u32 vcc, v4, v11
    v_sub_u32 v12, v4, v11
    v_add_u32 v12, 7, v12
    v_and_b32 v12, 7, v12
    v_mul_u32_u24 v11, {HS_}, v11
    v_lshl_add_u32 v11, v12, 1, v11
    s_mul_i32 s53, s47, {8*HS_}
    v_add_u32 v11, s53, v11
    v_cndmask_b32 v6, 0, v6, vcc
    ds_write_b16 v11, v6 offset:16
    ''')
    a(f'''
    s_lshr_b32 s60, s2, 2
    s_lshl_b32 s61, s60, 15
    s_and_b32 s62, s2, 3
    s_lshl_b32 s62, s62, 7          ; (8*(b&3))*16
    s_add_u32 s61, s61, s62
    s_add_u32 s61, s61, {LBASE + XP}
    v_lshlrev_b32 v9, 9, v8
    v_lshl_add_u32 v9, v4, 4, v9
    buffer_store_dwordx4 v[16:19], v9, s[36:39], s61 offen
    s_add_u32 s61, s61, 16384
    buffer_store_dwordx4 v[20:23], v9, s[36:39], s61 offen
    s_mov_b32 s50, 0xffff0000
    ''')
    for i in range(8):
        a(f'v_lshlrev_b32 v{56+2*i}, 16, v{16+i}\nv_and_b32 v{57+2*i}, s50, v{16+i}')
    a('v_pk_mul_f32 v[72:73], v[56:57], v[56:57]')
    for i in range(1, 8):
        a(f'v_pk_fma_f32 v[72:73], v[{56+2*i}:{57+2*i}], v[{56+2*i}:{57+2*i}], v[72:73]')
    for i in range(1, 8):
        a(f'v_pk_add_f32 v[56:57], v[56:57], v[{56+2*i}:{57+2*i}]')
    a(f'''
    v_add_f32 v56, v56, v57
    v_add_f32 v72, v72, v73
    v_permlane32_swap_b32 v56, v72
    v_add_f32 v56, v56, v72
    v_lshrrev_b32 v9, 5, v2
    v_lshlrev_b32 v9, 9, v9
    v_lshl_add_u32 v9, v4, 4, v9
    v_bfe_u32 v10, v2, 3, 2
    v_lshl_add_u32 v9, v10, 2, v9
    s_lshl_b32 s61, s60, 12
    s_lshl_b32 s63, s3, 10
    s_add_u32 s61, s61, s63
    s_add_u32 s61, s61, s62
    s_add_u32 s61, s61, {LBASE + STX}
    buffer_store_dword v56, v9, s[36:39], s61 offen
    s_mov_b32 s66, 0x05040100
    s_mov_b32 s67, 0x07060302
    ''')
    def fin(vd, vdst, tmp):
        for j in range(4):
            a(f'v_perm_b32 v{tmp+j}, v{vd+2*j+1}, v{vd+2*j}, s66')
            a(f'v_perm_b32 v{tmp+4+j}, v{vd+2*j+1}, v{vd+2*j}, s67')
        a(f'buffer_store_dwordx4 v[{tmp}:{tmp+3}], v{vdst}, s[36:39], 0 offen')
        a(f'buffer_store_dwordx4 v[{tmp+4}:{tmp+7}], v{vdst}, s[36:39], 0 offen offset:16')
    fin(24, 13, 76)
    fin(32, 14, 84)
    NC2 = a.label('k0_noC2')
    a(f's_cmp_lg_u32 s3, 0\ns_cbranch_scc1 {NC2}')
    fin(40, 15, 92)
    a(f'{NC2}:')
    a(f'''
    s_waitcnt vmcnt(0) lgkmcnt(0)
    {END}:
    s_endpgm
    ''')
    a.end_kernel(name, vgpr=248, sgpr=96)
```

```python
from layout import *
from asmx import merge
import struct

L_RED = 0
L_STAT = 32768
L_CS1 = 33792
L_CS3 = 35840
L_W3 = 49152
K1_LDS = 163840


def f2u(x):
    return struct.unpack('<I', struct.pack('<f', x))[0]


def vr(b, n=4, c='v'):
    return f'{c}[{b}:{b+n-1}]'


class K1:
    def __init__(self, a, opt):
        self.a = a
        self.opt = opt
        self.mode = opt.get('mode', 'sc1')
        self.ts_n = 0

    def emit(self, lst, tag=None):
        for l in lst: self.a(l, tag=tag)

    def ldfrags(self, dsts, vaddr, sreg, step4=4096, sc=' sc1'):
        out = []
        for i, d in enumerate(dsts):
            if i and i % 4 == 0: out.append(f's_add_u32 {sreg}, {sreg}, {step4}')
            out.append(f'buffer_load_dwordx4 {d}, {vaddr}, s[4:7], {sreg} offen offset:{(i%4)*1024}{sc}')
        return out

    def stores(self, lst):
        a = self.a
        if self.mode == 'sc1':
            for l in lst: a(l + ' sc1')
        elif self.mode == 'plain':
            for l in lst: a(l)
        else:
            S = a.label('st_slow'); E = a.label('st_end')
            for l in lst: a('.touch ' + l.split(None, 1)[1])
            a(f's_cmp_eq_u32 s17, 0\ns_cbranch_scc1 {S}')
            for l in lst: a(l)
            a(f's_branch {E}', tag='nocount')
            a(f'{S}:')
            for l in lst: a(l + ' sc1', tag='nocount')
            a(f'{E}:')

    def ts(self, name):
        if not self.opt.get('ts'): return
        n = self.ts_n; self.ts_n += 1
        self.opt.setdefault('ts_names', []).append(name)
        self.a(f'''
        s_memtime s[96:97]
        s_waitcnt lgkmcnt(0)
        v_mov_b32 v15, s96
        s_add_u32 s96, s95, {n*4}
        s_mov_b64 exec, 1
        buffer_store_dword v15, v2, s[4:7], s96 offen
        s_mov_b64 exec, -1
        ''')

    def publish(self, phase, extra_after=0):
        a = self.a
        a(f's_add_u32 s60, s16, {phase}\nv_mov_b32 v15, s60')
        a(f's_waitcnt vmcnt({extra_after})')
        a('s_mov_b64 exec, 1')
        self.stores(['buffer_store_dword v15, v2, s[4:7], s45 offen'])
        a('s_mov_b64 exec, -1')

    def poll(self, mask, phase):
        a = self.a
        P = a.label('poll')
        a(f'''
        s_add_u32 s60, s16, {phase}
        s_mov_b32 s61, 0
        {P}:
        buffer_load_dword v15, v2, s[4:7], s37 offen sc1
        s_add_u32 s61, s61, 1
        s_waitcnt vmcnt(0)
        v_cmp_gt_u32 vcc, s60, v15
        s_cmp_gt_u32 s61, {self.opt.get('spin', 1000000)}
        s_cbranch_scc1 {P}_x
        s_and_b64 vcc, vcc, {mask}
        s_cbranch_scc1 {P}
        {P}_x:
        ''')

    def rowstats(self, src, dst):
        o = []
        for i in range(1, 8):
            o.append(f'v_pk_add_f32 {vr(src,2)}, {vr(src,2)}, {vr(src+2*i,2)}')
        o += self.finstats(src, dst, [f'v_add_f32 v{src}, v{src}, v{src+1}'])
        return o

    def finstats(self, src, dst, pre):
        o = list(pre)
        o += [f'v_mul_f32 v{src}, {hex(f2u(1/512))}, v{src}',
              f'v_mov_b32 v{src+1}, v{src}',
              f'v_permlane32_swap_b32 v{src}, v{src+1}',
              f'v_fma_f32 v{dst+2}, -v{src}, v{src}, v{src+1}',
              f'v_max_f32 v{dst+2}, 0, v{dst+2}',
              f'v_add_f32 v{dst}, {hex(f2u(1e-5))}, v{dst+2}',
              f'v_rsq_f32 v{dst}, v{dst}',
              f'v_mov_b32 v{dst+3}, v{src}',
              f'v_mul_f32 v{dst+1}, v{src}, v{dst}',
              f'v_sub_f32 v{dst+1}, 0, v{dst+1}']
        return o

    def gelu_pairs(self, zs, tmp, outs):
        o = []
        T = [tmp + 2 * i for i in range(len(zs))]
        for z, t in zip(zs, T): o.append(f'v_pk_mul_f32 {vr(t,2)}, {vr(z,2)}, {vr(z,2)}')
        for z, t in zip(zs, T): o.append(f'v_pk_fma_f32 {vr(t,2)}, {vr(t,2)}, s[34:35], s[34:35] op_sel:[0,0,1] op_sel_hi:[1,0,1]')
        for z, t in zip(zs, T): o.append(f'v_pk_mul_f32 {vr(t,2)}, {vr(t,2)}, {vr(z,2)}')
        for t in T: o += [f'v_exp_f32 v{t}, v{t}', f'v_exp_f32 v{t+1}, v{t+1}']
        for t in T: o.append(f'v_pk_add_f32 {vr(t,2)}, {vr(t,2)}, 1.0 op_sel_hi:[1,0]')
        for t in T: o += [f'v_rcp_f32 v{t}, v{t}', f'v_rcp_f32 v{t+1}, v{t+1}']
        for z, t in zip(zs, T): o.append(f'v_pk_mul_f32 {vr(t,2)}, {vr(t,2)}, {vr(z,2)}')
        for t, d in zip(T, outs): o.append(f'v_cvt_pk_bf16_f32 v{d}, v{t}, v{t+1}')
        return o

    def blk_write(self, acc, vaddr, off):
        return [f'ds_write_b128 {vaddr}, {vr(acc+4*g)} offset:{off+g*1024}' for g in range(4)]

    def blk_read(self, dst, vaddr, off):
        return [f'ds_read_b128 {vr(dst+4*g)}, {vaddr} offset:{off+g*1024}' for g in range(4)]

    def xchg1(self, accA, accB, extra_w=()):
        o = ['v_xor_b32 v20, 0x4000, v10', 'v_xor_b32 v21, 0x6000, v10']
        o += list(extra_w)
        o += self.blk_write(accA, 'v20', 0) + self.blk_write(accB, 'v21', 4096)
        o += ['s_waitcnt lgkmcnt(0)', 's_barrier']
        o += self.blk_read(accA, 'v10', 0) + self.blk_read(accB, 'v10', 4096)
        return o

    def xchg2(self, accC):
        o = ['v_xor_b32 v20, 0x2000, v10']
        o += self.blk_write(accC, 'v10', 0)
        o += ['s_waitcnt lgkmcnt(0)', 's_barrier']
        o += self.blk_read(accC, 'v20', 0)
        return o

    def padd(self, d, x, y, n=16):
        return [f'v_pk_add_f32 {vr(d+i,2)}, {vr(x+i,2)}, {vr(y+i,2)}' for i in range(0, n, 2)]

    def unpack(self, src, dst, n):
        o = []
        for i in range(n):
            o += [f'v_lshlrev_b32 v{dst+2*i}, 16, v{src+i}', f'v_and_b32 v{dst+2*i+1}, s36, v{src+i}']
        return o

    def sumsq(self, x, t, n=16):
        o = [f'v_pk_add_f32 {vr(t,2)}, {vr(x,2)}, {vr(x+2,2)}', f'v_pk_mul_f32 {vr(t+2,2)}, {vr(x,2)}, {vr(x,2)}']
        for i in range(2, n, 2):
            if i > 2: o.append(f'v_pk_add_f32 {vr(t,2)}, {vr(t,2)}, {vr(x+i,2)}')
            o.append(f'v_pk_fma_f32 {vr(t+2,2)}, {vr(x+i,2)}, {vr(x+i,2)}, {vr(t+2,2)}')
        o += self.foldsq(t)
        return o

    def foldsq(self, t):
        return [f'v_add_f32 v{t}, v{t}, v{t+1}', f'v_add_f32 v{t+2}, v{t+2}, v{t+3}',
                f'v_permlane32_swap_b32 v{t}, v{t+2}', f'v_add_f32 v{t}, v{t}, v{t+2}']

    def pf_w1y(self):
        o = []
        for t, c in enumerate((2, 3, 1, 0)):
            o += [f's_xor_b32 s62, s12, {c}', 's_lshl_b32 s62, s62, 15', 's_add_u32 s62, s62, s39']
            o += self.ldfrags([vr((t*8+ks)*4, 4, 'a') for ks in range(8)], 'v1', 's62', sc='')
        o += [f's_add_u32 s62, s38, {YP}']
        o += self.ldfrags([vr(56+4*ks) for ks in range(8)], 'v1', 's62', sc='')
        return o

    def pf_w2(self):
        o = ['s_mov_b32 s62, s43'] + self.ldfrags([vr(128+4*ks, 4, 'a') for ks in range(8)], 'v1', 's62', sc='')
        o += ['s_xor_b32 s62, s43, 0x8000'] + self.ldfrags([vr(160+4*ks, 4, 'a') for ks in range(8)], 'v1', 's62', sc='')
        return o

    def pf_w4(self, k0, k1):
        o = []
        for sl in range(2):
            o += [f's_add_u32 s62, s{46+sl}, {k0*1024}']
            o += self.ldfrags([vr((ks*2+sl)*4, 4, 'a') for ks in range(k0, k1)], 'v1', 's62', sc='')
        return o

    def pf_w3(self):
        o = [f's_mul_i32 s62, s13, 114688', f's_mul_i32 s63, s12, 28672', 's_add_u32 s62, s62, s63',
             f's_add_u32 s62, s62, {WP3}', f's_add_u32 s63, s63, {L_W3}']
        for g in range(7):
            o.append(f's_add_u32 m0, s63, {g*4096}')
            if g: o.append('s_add_u32 s62, s62, 4096')
            o += [f'buffer_load_dwordx4 v1, s[4:7], s62 offen offset:{i*1024} lds' for i in range(4)]
        return o

    def first_only(self, lst):
        a = self.a
        L = a.label('skip')
        a(f's_cmp_lg_u32 s16, 0\ns_cbranch_scc1 {L}')
        self.emit(lst, tag='nocount')
        a(f'{L}:')

    def gen(self, name):
        a = self.a
        a.begin_kernel(name)
        END = a.label('k1_end')
        k1c = -2 * 0.7978845608028654 * 1.4426950408889634
        a(f'''
        s_cmp_ge_u32 s2, 256
        s_cbranch_scc1 {END}
        s_load_dwordx2 s[8:9], s[0:1], 88
        s_load_dwordx2 s[4:5], s[0:1], 104
        v_lshrrev_b32 v16, 6, v0
        v_and_b32 v17, 63, v0           ; lane
        v_readfirstlane_b32 s12, v16
        v_lshlrev_b32 v1, 4, v17
        v_lshlrev_b32 v2, 2, v17
        s_lshr_b32 s60, s2, 3           ; rank
        s_and_b32 s13, s60, 15
        s_lshr_b32 s60, s60, 4
        s_and_b32 s14, s2, 7
        s_lshl_b32 s14, s14, 1
        s_add_u32 s14, s14, s60         ; sg
        s_mov_b32 s15, {LBASE}
        s_mov_b32 s16, 0
        s_mov_b32 s17, 0
        s_lshr_b32 s18, s13, 2
        s_and_b32 s19, s13, 3
        s_lshr_b32 s20, s13, 3
        s_and_b32 s21, s13, 7
        s_mov_b32 s6, {WS_BYTES}
        s_mov_b32 s7, 0x00020000
        s_mov_b32 s10, 2097152
        s_mov_b32 s11, 0x00020000
        s_lshl_b32 s48, s14, 2          ; sg*4
        s_add_u32 s60, s48, s18         ; mblkG1
        s_lshl_b32 s61, s12, 13         ; w*8192
        s_lshl_b32 s38, s60, 15
        s_add_u32 s38, s38, s61
        s_lshl_b32 s39, s19, 17
        s_add_u32 s39, s39, s61
        s_add_u32 s39, s39, {WP1}
        s_waitcnt lgkmcnt(0)
        ''')
        self.emit(self.pf_w1y())
        a(f'''
        s_lshl_b32 s40, s60, 12
        s_add_u32 s40, s40, {STX}
        s_lshl_b32 s41, s19, 13
        s_lshl_b32 s62, s12, 11
        s_add_u32 s41, s41, s62
        s_lshl_b32 s42, s19, 15
        s_lshl_b32 s62, s60, 9
        s_add_u32 s42, s42, s62
        s_add_u32 s42, s42, {STA}
        s_and_b32 s49, s12, 1           ; nb_own
        s_lshr_b32 s50, s12, 1          ; mb_own
        s_lshl_b32 s51, s21, 1
        s_add_u32 s51, s51, s49
        s_lshl_b32 s43, s51, 15
        s_add_u32 s43, s43, s61
        s_add_u32 s43, s43, {WP2}
        s_lshl_b32 s44, s20, 1
        s_add_u32 s44, s44, s50
        s_add_u32 s44, s44, s48
        s_lshl_b32 s37, s14, 8
        s_add_u32 s37, s37, {FLAGS}
        s_lshl_b32 s45, s13, 4
        s_lshl_b32 s62, s12, 2
        s_add_u32 s45, s45, s62
        s_add_u32 s45, s45, s37
        s_mul_i32 s62, s12, 28672
        s_add_u32 s62, s62, {WP4}
        s_mul_i32 s46, s51, 114688
        s_add_u32 s46, s46, s62
        s_xor_b32 s63, s51, 1
        s_mul_i32 s47, s63, 114688
        s_add_u32 s47, s47, s62
        s_mov_b32 s34, {hex(f2u(k1c * 0.044715))}
        s_mov_b32 s35, {hex(f2u(k1c))}
        s_mov_b32 s36, 0xffff0000
        ''')
        if self.opt.get('ts'):
            a(f'''
            s_lshl_b32 s95, s2, 10
            s_lshl_b32 s62, s12, 8
            s_add_u32 s95, s95, s62
            s_add_u32 s95, s95, {TS}
            ''')
        if self.mode == 'dual':
            a(f'''
            s_getreg_b32 s52, hwreg(HW_REG_XCC_ID)
            s_and_b32 s52, s52, 15
            s_add_u32 s52, s52, 1
            v_mov_b32 v15, s52
            s_add_u32 s62, s45, {XT - FLAGS}
            s_mov_b64 exec, 1
            buffer_store_dword v15, v2, s[4:7], s62 offen sc1
            s_mov_b64 exec, -1
            ''')
        a(f'''
        v_lshrrev_b32 v18, 2, v17       ; pi
        v_bfe_u32 v19, v17, 1, 1        ; pw>>1
        v_cmp_eq_u32 s[64:65], s13, v18 ; own
        v_lshrrev_b32 v20, 3, v18       ; pi>>3
        v_lshl_add_u32 v21, v20, 1, v19
        v_cmp_eq_u32 s[22:23], s18, v21
        v_cmp_eq_u32 s[26:27], s12, v21
        v_and_b32 v20, 3, v18
        v_cmp_eq_u32 s[24:25], s12, v20
        v_lshrrev_b32 v20, 2, v18
        v_cmp_eq_u32 s[28:29], s12, v20
        v_cmp_eq_u32 s[66:67], s20, v19
        s_nop 1
        s_and_b64 s[28:29], s[28:29], s[66:67]
        s_or_b64 s[22:23], s[22:23], s[64:65]
        s_or_b64 s[24:25], s[24:25], s[64:65]
        s_or_b64 s[26:27], s[26:27], s[64:65]
        s_or_b64 s[28:29], s[28:29], s[64:65]
        ''')
        def delta(q, d):
            return f'''
            s_lshr_b32 {d}, {q}, 1
            s_add_u32 {d}, {d}, 1
            s_sub_u32 s63, 0, {d}
            s_bitcmp1_b32 {q}, 0
            s_cselect_b32 {d}, s63, {d}
            '''
        a(f'''
        v_and_b32 v18, 31, v17          ; m32
        v_lshrrev_b32 v19, 5, v17       ; q2
        {delta('s19', 's62')}
        s_lshl_b32 s63, s18, 5
        s_add_u32 s63, s63, s62
        v_add_u32 v20, s63, v18
        v_ashrrev_i32 v21, 5, v20
        v_add_u32 v21, s48, v21
        v_lshlrev_b32 v21, 15, v21
        v_and_b32 v22, 31, v20
        v_lshl_add_u32 v21, v22, 4, v21
        v_lshl_add_u32 v21, v19, 9, v21
        v_add_u32 v21, {HS}, v21
        v_mov_b32 v23, {OOB}
        v_cmp_gt_u32 vcc, 0x80, v20
        v_ashrrev_i32 v22, 7, v20       ; -1,0,+1
        v_cndmask_b32 v3, v23, v21, vcc
        v_add_u32 v22, s14, v22         ; sg'
        v_and_b32 v21, 1, v20           ; e
        v_lshlrev_b32 v21, 4, v21
        v_lshl_add_u32 v21, v19, 5, v21
        v_lshl_add_u32 v21, v22, 6, v21
        v_add_u32 v21, {SH}, v21
        v_cndmask_b32 v21, v21, v23, vcc
        v_cmp_gt_u32 vcc, 16, v22
        s_nop 1
        v_cndmask_b32 v4, v23, v21, vcc
        {delta('s12', 's62')}
        ''')
        for h, (vd, sm) in enumerate(((5, 30), (6, 32))):
            a(f'''
            s_xor_b32 s64, s44, {1 - h}
            s_and_b32 s65, s64, 3
            s_lshl_b32 s65, s65, 5
            s_sub_u32 s65, s65, s62
            v_add_u32 v20, s65, v18         ; source row (signed) = rho - delta
            v_cmp_le_u32 s[{sm}:{sm+1}], 0x80, v20
            '''.replace(f'v_cmp_le_u32 s[{sm}:{sm+1}], 0x80, v20', f'v_cmp_le_u32 vcc, 0x80, v20\ns_nop 1\ns_mov_b64 s[{sm}:{sm+1}], vcc') + f'''
            s_lshl_b32 s64, s64, 15
            s_add_u32 s64, s64, {HS}
            v_add_u32 v21, s64, v1
            v_and_b32 v22, 1, v18
            v_lshlrev_b32 v22, 4, v22
            v_lshl_add_u32 v22, v19, 5, v22
            s_lshl_b32 s64, s14, 6
            s_add_u32 s64, s64, {SH}
            v_add_u32 v22, s64, v22
            v_cndmask_b32 v{vd}, v21, v22, vcc
            ''')
        a(f'''
        v_and_b32 v20, 15, v17          ; m16
        v_lshrrev_b32 v21, 4, v17       ; q4
        v_bfe_u32 v22, v17, 4, 1
        v_lshlrev_b32 v7, 14, v22
        v_lshl_add_u32 v7, v19, 9, v7
        v_lshl_add_u32 v7, v20, 4, v7
        v_lshlrev_b32 v8, 9, v22
        v_lshl_add_u32 v8, v20, 4, v8
        v_lshl_add_u32 v8, v19, 3, v8
        v_lshlrev_b32 v9, 10, v18
        v_lshl_add_u32 v9, v19, 4, v9
        v_add_u32 v10, s61, v1
        v_add_u32 v11, {L_W3}, v1
        v_add_u32 v0, {L_W3 + 65536}, v1
        v_lshlrev_b32 v12, 4, v18
        v_lshlrev_b32 v13, 4, v19
        s_lshl_b32 s62, s12, 7
        s_add_u32 s62, s62, {L_CS1}
        v_add_u32 v13, s62, v13
        v_lshlrev_b32 v14, 4, v21
        v_add_u32 v14, {L_CS3}, v14
        ''')
        LOOP = a.label('layer')
        a(f'{LOOP}:')
        self.g1(); self.g2(); self.g3(); self.g4(LOOP)
        a(f'{END}:\ns_endpgm')
        a.end_kernel(name, vgpr=256, sgpr=100, agpr=256)

    def g1(self):
        a = self.a
        X, Y, ACC, ST, CS, T = 24, 56, 88, 152, 168, 184
        self.ts('g1_start')
        NP = a.label('g1_nopoll')
        a(f's_cmp_eq_u32 s16, 0\ns_cbranch_scc1 {NP}')
        n0 = len(a.items)
        self.poll('s[22:23]', 0)
        for i in a.items[n0:]: i.tags |= {'nocount', 'nomodel'}
        a(f'{NP}:')
        self.ts('g1_polled')
        a('s_add_u32 s62, s40, s15')
        self.emit(self.ldfrags([vr(ST+4*i) for i in range(4)], 'v1', 's62'))
        a(f's_add_u32 s62, s38, s15')
        self.emit(self.ldfrags([vr(X+4*ks) for ks in range(8)], 'v1', 's62'))
        self.emit(self.pf_w2())
        cs = self.pf_w3()
        cs += ['v_lshrrev_b32 v20, 4, v1', 'v_lshrrev_b32 v21, 8, v1', 'v_xor_b32 v22, v20, v21', 'v_and_b32 v22, 1, v22',
               'v_cmp_eq_u32 vcc, 0, v22', f'v_mov_b32 v23, 0x3f803f80']
        cs += [f'v_cndmask_b32 v{T+i}, 0, v23, vcc' for i in range(4)]
        cs += ['v_and_b32 v20, 1, v20', 'v_lshlrev_b32 v20, 6, v20', 'v_lshl_add_u32 v20, v21, 4, v20',
               's_lshl_b32 s62, s12, 9', f's_add_u32 s62, s62, {L_CS1}', 'v_add_u32 v20, s62, v20']
        for t in range(4):
            for ks in range(8):
                c = vr(CS + 4 * t)
                cs.append(f'v_mfma_f32_16x16x32_bf16 {c}, {vr((t*8+ks)*4, 4, "a")}, {vr(T)}, {c if ks else 0}')
        for t, c in enumerate((2, 3, 1, 0)):
            cs += [f's_xor_b32 s62, s12, {c}', 's_lshl_b32 s62, s62, 7', 'v_add_u32 v21, s62, v20',
                   f'ds_write_b128 v21, {vr(CS+4*t)}']
        cs += ['s_waitcnt lgkmcnt(0) ; @nomodel', 's_barrier']
        self.first_only(cs)
        for p in range(4):
            for g in range(4):
                d = (CS if p == 0 else ACC + 16 * p) + 4 * g
                a(f'ds_read_b128 {vr(d)}, v13 offset:{p*512+g*32}')
        self.emit(self.padd(CS, CS, ACC + 16) + self.padd(ACC + 32, ACC + 32, ACC + 48) + self.padd(CS, CS, ACC + 32))
        self.emit(self.rowstats(ST, 16))
        SQ = ST + 4
        for ks in range(8):
            x = X + 4 * ks; y = Y + 4 * ks
            o = self.unpack(x, T, 4) + self.unpack(y, T + 8, 4)
            for i in range(4):
                o.append(f'v_pk_fma_f32 {vr(T+16+2*i,2)}, {vr(T+2*i,2)}, v[16:17], v[16:17] op_sel:[0,0,1] op_sel_hi:[1,0,1]')
            for i in range(4):
                o.append(f'v_pk_fma_f32 {vr(T+2*i,2)}, {vr(T+16+2*i,2)}, {vr(T+8+2*i,2)}, {vr(T+2*i,2)}')
            for i in range(4):
                o.append(f'v_cvt_pk_bf16_f32 v{x+i}, v{T+2*i}, v{T+2*i+1}')
            for i in range(4):
                p = vr(T + 2 * i, 2)
                if ks == 0 and i == 0:
                    o += [f'v_pk_mul_f32 {vr(SQ+2,2)}, {p}, {p}', f'v_pk_add_f32 {vr(SQ,2)}, {p}, {vr(T+2,2)}']
                else:
                    o.append(f'v_pk_fma_f32 {vr(SQ+2,2)}, {p}, {p}, {vr(SQ+2,2)}')
                    if not (ks == 0 and i == 1): o.append(f'v_pk_add_f32 {vr(SQ,2)}, {vr(SQ,2)}, {p}')
                if i == 0 or i == 2:
                    t = i // 2
                    c = vr(ACC + 16 * t, 16)
                    o.append(f'v_mfma_f32_32x32x16_bf16 {c}, {vr((t*8+ks)*4, 4, "a")}, {vr(x)}, {c if ks else 0}')
            self.emit(o)
        main = []
        for t in (2, 3):
            for ks in range(8):
                c = vr(ACC + 16 * t, 16)
                main.append(f'v_mfma_f32_32x32x16_bf16 {c}, {vr((t*8+ks)*4, 4, "a")}, {vr(X+4*ks)}, {c if ks else 0}')
        side = self.foldsq(SQ) + ['s_lshl_b32 s62, s12, 2', 'v_add_u32 v22, s62, v1']
        side += self.xchg1(ACC, ACC + 16, [f'ds_write_b32 v22, v{SQ} offset:{L_STAT}'])
        side += [f'ds_read_b128 {vr(ST)}, v1 offset:{L_STAT}']
        side += self.padd(ACC, ACC, ACC + 16)
        side += self.finstats(ST, 18, [f'v_pk_add_f32 {vr(ST,2)}, {vr(ST,2)}, {vr(ST+2,2)}', f'v_add_f32 v{ST}, v{ST}, v{ST+1}'])
        side += ['v_mul_f32 v22, v18, v18', f'v_mov_b32 v23, {hex(f2u(1e-5))}', 'v_fma_f32 v22, v22, v20, v23', 'v_rsq_f32 v22, v22',
                 'v_sub_f32 v23, 0, v21', 'v_mul_f32 v22, v22, v18']
        side += [f'v_pk_fma_f32 {vr(ACC+i,2)}, {vr(CS+i,2)}, v[22:23], {vr(ACC+i,2)} op_sel:[0,1,0] op_sel_hi:[1,1,1]' for i in range(0, 16, 2)]
        self.emit(merge(main, side, ratio=3))
        self.ts('g1_main')
        self.emit(self.xchg2(ACC + 32))
        self.emit(self.padd(ACC, ACC, ACC + 48))
        self.emit(self.padd(ACC, ACC, ACC + 32))
        self.emit([f'v_pk_mul_f32 {vr(ACC+i,2)}, {vr(ACC+i,2)}, v[22:23] op_sel_hi:[1,0]' for i in range(0, 16, 2)])
        self.emit(self.gelu_pairs([ACC + i for i in range(0, 16, 2)], T, [ACC + 16 + i for i in range(8)]))
        self.emit([f'v_min_u32 v{ACC+16+i}, -2, v{ACC+16+i}' for i in range(8)])
        a('s_add_u32 s62, s41, s15\ns_add_u32 s63, s42, s15')
        if self.mode == 'dual':
            self.first_only(self.xcc_check())
        a(f'buffer_store_dwordx4 {vr(ACC+16)}, v4, s[4:7], s62 offen sc1')
        a(f'buffer_store_dwordx4 {vr(ACC+20)}, v4, s[4:7], s62 offen offset:1024 sc1')
        self.stores([f'buffer_store_dwordx4 {vr(ACC+16)}, v3, s[4:7], s62 offen',
                     f'buffer_store_dwordx4 {vr(ACC+20)}, v3, s[4:7], s62 offen offset:1024',
                     f'buffer_store_dwordx4 v[16:19], v12, s[4:7], s63 offen'])
        self.ts('g1_stored')
        self.publish(1)

    def xcc_check(self):
        P = self.a.label('xcc')
        return [f's_add_u32 s64, s37, {XT - FLAGS}', 's_mov_b32 s61, 0', f'{P}:',
                'buffer_load_dword v15, v2, s[4:7], s64 offen sc1', 's_add_u32 s61, s61, 1', 's_waitcnt vmcnt(0) ; @nomodel',
                'v_cmp_eq_u32 vcc, 0, v15', f's_cmp_gt_u32 s61, {self.opt.get("spin", 1000000)}', f's_cbranch_scc1 {P}_x',
                f's_cbranch_vccnz {P}', f'{P}_x:',
                'v_cmp_ne_u32 vcc, s52, v15', 's_nop 1', 's_cmp_eq_u64 vcc, 0', 's_cselect_b32 s17, 1, 0']

    def g2(self):
        a = self.a
        X, ACC, XT_, YT, A4, T, XA = 24, 88, 152, 160, 168, 184, 216
        a(f'''
        s_lshl_b32 s62, s44, 15
        s_lshl_b32 s63, s51, 11
        s_add_u32 s62, s62, s63
        s_add_u32 s63, s62, {YP}
        s_add_u32 s62, s62, s15
        ''')
        self.emit(self.ldfrags([vr(XT_), vr(XT_+4)], 'v1', 's62') + self.ldfrags([vr(YT), vr(YT+4)], 'v1', 's63'))
        self.poll('s[24:25]', 1)
        self.ts('g2_polled')
        a('s_lshl_b32 s64, s12, 13\ns_add_u32 s64, s64, s15')
        for h in range(2):
            a('s_mov_b32 s62, s64')
            self.emit(self.ldfrags([vr(X+32*h+4*ks) for ks in range(8)], f'v{5+h}', 's62'))
        a(f'''
        s_lshl_b32 s62, s12, 15
        s_lshl_b32 s63, s44, 9
        s_add_u32 s62, s62, s63
        s_add_u32 s62, s62, s15
        s_add_u32 s62, s62, {STA}
        buffer_load_dwordx4 {vr(A4)}, v12, s[4:7], s62 offen sc1
        ''')
        self.emit(self.pf_w4(0, 16))

        def shadow_check(h):
            sm = f's[{30+2*h}:{31+2*h}]'
            L = a.label('shchk')
            a(f's_cmp_eq_u64 {sm}, 0\ns_cbranch_scc1 {L}_x')
            n0 = len(a.items)
            b = X + 32 * h
            a(f's_mov_b32 s61, 0\ns_waitcnt vmcnt(0)\n{L}:')
            a(f'v_max3_u32 v20, v{b}, v{b+1}, v{b+2}')
            for i in range(3, 31, 2): a(f'v_max3_u32 v20, v20, v{b+i}, v{b+i+1}')
            a(f'''v_max_u32 v20, v20, v{b+31}
            v_cmp_eq_u32 vcc, -1, v20
            s_add_u32 s61, s61, 1
            s_cmp_gt_u32 s61, {self.opt.get('spin', 1000000)}
            s_cbranch_scc1 {L}_x
            s_and_b64 vcc, vcc, {sm}
            s_cbranch_scc0 {L}_x
            s_mov_b64 exec, {sm}
            s_mov_b32 s62, s64''')
            self.emit(self.ldfrags([vr(b+4*ks) for ks in range(8)], f'v{5+h}', 's62'))
            a(f's_mov_b64 exec, -1\ns_waitcnt vmcnt(0)\ns_branch {L}')
            for i in a.items[n0:]: i.tags |= {'nocount', 'nomodel', 'nowait'}
            a(f'{L}_x:')
        shadow_check(0)
        main = []
        for ks in range(8):
            for sl in range(2):
                c = vr(ACC + 16 * sl, 16)
                main.append(f'v_mfma_f32_32x32x16_bf16 {c}, {vr(128+32*sl+4*ks, 4, "a")}, {vr(X+4*ks)}, {c if ks else 0}')
        side = self.unpack(XT_, XA, 8) + self.unpack(YT, T, 8)
        self.emit(merge(main, side, ratio=2))
        shadow_check(1)
        main = []
        for sl in (1, 0):
            for ks in range(8):
                c = vr(ACC + 16 * (3 - sl), 16)
                main.append(f'v_mfma_f32_32x32x16_bf16 {c}, {vr(128+32*sl+4*ks, 4, "a")}, {vr(X+32+4*ks)}, {c if ks else 0}')
        side = [f'v_pk_fma_f32 {vr(T+16+i,2)}, {vr(XA+i,2)}, {vr(A4,2)}, {vr(A4,2)} op_sel:[0,0,1] op_sel_hi:[1,0,1]' for i in range(0, 16, 2)]
        side += self.xchg1(ACC, ACC + 16)
        side += [f'v_pk_fma_f32 {vr(XA+i,2)}, {vr(T+16+i,2)}, {vr(T+i,2)}, {vr(XA+i,2)}' for i in range(0, 16, 2)]
        side += [f'v_cvt_pk_bf16_f32 v{XT_+i}, v{XA+2*i}, v{XA+2*i+1}' for i in range(8)]
        side += self.unpack(XT_, XA, 8)
        side += [f'v_pk_fma_f32 {vr(T+i,2)}, {vr(XA+i,2)}, {vr(A4+2,2)}, {vr(A4+2,2)} op_sel:[0,0,1] op_sel_hi:[1,0,1]' for i in range(0, 16, 2)]
        side += self.padd(ACC, ACC, ACC + 16) + self.padd(ACC, ACC, T)
        self.emit(merge(main, side, ratio=4))
        self.ts('g2_main')
        self.emit(self.xchg2(ACC + 32))
        self.emit(self.padd(ACC, ACC, ACC + 48) + self.padd(ACC, ACC, ACC + 32))
        self.emit([f'v_cvt_pk_bf16_f32 v{ACC+16+i}, v{ACC+2*i}, v{ACC+2*i+1}' for i in range(8)])
        a(f'''
        s_lshl_b32 s62, s44, 15
        s_lshl_b32 s63, s51, 10
        s_add_u32 s62, s62, s63
        s_add_u32 s62, s62, s15
        s_add_u32 s62, s62, {X1P}
        ''')
        self.emit(self.sumsq(ACC, T))
        self.stat_off('s63', ST1, 's15')
        self.stores([f'buffer_store_dwordx4 {vr(ACC+16)}, v7, s[4:7], s62 offen',
                     f'buffer_store_dwordx4 {vr(ACC+20)}, v7, s[4:7], s62 offen offset:256',
                     f'buffer_store_dword v{T}, v1, s[4:7], s63 offen'])
        self.emit(self.padd(XA, XA, ACC))
        self.emit([f'v_accvgpr_write_b32 a{224+i}, v{XA+i}' for i in range(16)])
        self.ts('g2_stored')
        self.publish(2)
        cs = [f'v_mov_b32 v{T+i}, 0x3f803f80' for i in range(4)]
        cs += ['s_lshl_b32 s62, s12, 1', 's_add_u32 s63, s62, 1', 's_min_u32 s63, s63, 6']
        for n, s in enumerate(('s62', 's63')):
            cs += [f's_lshl_b32 s64, {s}, 14', f'v_add_u32 v20, s64, v11']
            cs += [f'ds_read_b128 {vr(X+64*n+4*ks)}, v20 offset:{ks*1024}' for ks in range(16)]
        cs += ['s_waitcnt lgkmcnt(0) ; @nomodel']
        for n in range(2):
            c = vr(T + 4 + 4 * n)
            cs += [f'v_mfma_f32_16x16x32_bf16 {c}, {vr(X+64*n+4*ks)}, {vr(T)}, {c if ks else 0}' for ks in range(16)]
        for n, s in enumerate(('s62', 's63')):
            cs += [f's_lshl_b32 s64, {s}, 6', 'v_add_u32 v20, s64, v14', f'ds_write_b128 v20, {vr(T+4+4*n)}']
        cs += ['s_waitcnt lgkmcnt(0) ; @nomodel', 's_barrier']
        self.first_only(cs)

    def stat_off(self, d, base, lb):
        self.a(f'''
        s_lshl_b32 {d}, s44, 12
        s_lshr_b32 s64, s51, 2
        s_lshl_b32 s64, s64, 10
        s_add_u32 {d}, {d}, s64
        s_and_b32 s64, s51, 3
        s_lshl_b32 s64, s64, 2
        s_add_u32 {d}, {d}, s64
        s_add_u32 {d}, {d}, {lb}
        s_add_u32 {d}, {d}, {base}
        ''')

    def g3(self):
        a = self.a
        X, ACC, WB, T = 24, 152, 208, 232
        NWB = 6
        self.poll('s[26:27]', 2)
        self.ts('g3_polled')
        a(f'''
        s_add_u32 s65, s48, s12         ; mblk32
        s_lshl_b32 s62, s65, 12
        s_add_u32 s62, s62, s15
        s_add_u32 s62, s62, {ST1}
        ''')
        self.emit(self.ldfrags([vr(T+4*i) for i in range(4)], 'v1', 's62'))
        a(f'''
        s_lshl_b32 s62, s65, 15
        s_add_u32 s62, s62, s15
        s_add_u32 s62, s62, {X1P}
        s_add_u32 s63, s62, 16384
        ''')
        for ks in range(16):
            if ks and ks % 4 == 0: a('s_add_u32 s62, s62, 4096\ns_add_u32 s63, s63, 4096')
            for mb in range(2):
                a(f'buffer_load_dwordx4 {vr(X+(ks*2+mb)*4)}, v1, s[4:7], s{62+mb} offen offset:{(ks%4)*1024} sc1')
        self.emit(self.pf_w4(16, 28))
        a(f'''
        s_mul_i32 s66, s65, 114688
        s_mul_i32 s64, s13, 7168
        s_add_u32 s66, s66, s64
        s_add_u32 s66, s66, s15
        s_add_u32 s66, s66, {H2P}
        s_add_u32 s67, s66, 4096
        ''')
        seq = [(nb, ks) for ks in range(16) for nb in range(4)] + [(nb, ks) for nb in (4, 5, 6) for ks in range(16)]

        def wread(i):
            nb, ks = seq[i]
            va, off = ('v11', nb * 16384 + ks * 1024) if nb < 4 else ('v0', (nb - 4) * 16384 + ks * 1024)
            return f'ds_read_b128 {vr(WB+4*(i%NWB))}, {va} offset:{off}'

        def mstream(i0, i1):
            o = []
            for i in range(i0, i1):
                nb, ks = seq[i]
                for mb in range(2):
                    c = vr(ACC + (nb * 2 + mb) * 4)
                    o.append(f'v_mfma_f32_16x16x32_bf16 {c}, {vr(WB+4*(i%NWB))}, {vr(X+(ks*2+mb)*4)}, {c if ks else 0}')
                if i + NWB < len(seq): o.append(wread(i + NWB))
            return o

        def epi(nb):
            c = ACC + nb * 8
            o = [f'ds_read_b128 {vr(T)}, v14 offset:{nb*64}']
            for mb in range(2):
                sp = vr(16 + 2 * mb, 2)
                for i in range(2):
                    o.append(f'v_pk_mul_f32 {vr(T+4+4*mb+2*i,2)}, {vr(T+2*i,2)}, {sp} op_sel:[0,1] op_sel_hi:[1,1]')
            for mb in range(2):
                sp = vr(16 + 2 * mb, 2)
                for i in range(2):
                    r = c + 4 * mb + 2 * i
                    o.append(f'v_pk_fma_f32 {vr(r,2)}, {vr(r,2)}, {sp}, {vr(T+4+4*mb+2*i,2)} op_sel_hi:[1,0,1]')
            o += self.gelu_pairs([c + 2 * i for i in range(4)], T + 4, [c + i for i in range(4)])
            return o

        def st(nb):
            c = ACC + nb * 8
            s, off = ('s66', nb * 1024) if nb < 4 else ('s67', (nb - 4) * 1024)
            return [f'buffer_store_dwordx2 {vr(c+2*mb,2)}, v8, s[4:7], {s} offen offset:{off+256*mb}' for mb in range(2)]
        for i in range(NWB): a(wread(i))
        side = self.rowstats(T, 20)
        side += ['v_mov_b32 v16, v20', 'v_mov_b32 v18, v20', 'v_mov_b32 v17, v21', 'v_mov_b32 v19, v21',
                 'v_permlane16_swap_b32 v16, v18', 'v_permlane16_swap_b32 v17, v19']
        self.emit(merge(mstream(0, 64), side, ratio=0.5))
        self.ts('g3_A')
        self.emit(merge(mstream(64, 80), epi(0) + epi(1)))
        self.stores(st(0) + st(1))
        self.emit(merge(mstream(80, 96), epi(2) + epi(3)))
        self.stores(st(2) + st(3))
        self.emit(merge(mstream(96, 112), epi(4) + epi(5)))
        self.ts('g3_B')
        self.stores(st(4) + st(5))
        self.emit(epi(6))
        self.stores(st(6))
        self.ts('g3_stored')
        self.publish(3)

    def g4(self, LOOP):
        a = self.a
        X, ACC, T = 24, 152, 216
        NX = 32
        self.poll('s[28:29]', 3)
        self.ts('g4_polled')
        a(f'''
        s_mul_i32 s64, s12, 28672
        s_add_u32 s64, s64, s15
        s_add_u32 s64, s64, {H2P}
        s_xor_b32 s62, s44, 1
        s_mul_i32 s62, s62, 114688
        s_add_u32 s68, s62, s64
        s_mul_i32 s63, s44, 114688
        s_add_u32 s69, s63, s64
        ''')

        def xload(i):
            h, ks = divmod(i, 28)
            o = []
            if ks and ks % 4 == 0: o.append(f's_add_u32 s{68+h}, s{68+h}, 4096')
            o.append(f'buffer_load_dwordx4 {vr(X+4*(i%NX))}, v1, s[4:7], s{68+h} offen offset:{(ks%4)*1024} sc1')
            return o
        for i in range(NX): self.emit(xload(i))

        def mm(h, k0, k1):
            o = []
            for ks in range(k0, k1):
                i = h * 28 + ks
                for sl in range(2):
                    c = vr(ACC + 16 * (sl if h == 0 else 3 - sl), 16)
                    o.append(f'v_mfma_f32_32x32x16_bf16 {c}, {vr((ks*2+sl)*4, 4, "a")}, {vr(X+4*(i%NX))}, {c if ks else 0}')
                if i + NX < 56: o += xload(i + NX)
            return o
        self.emit(merge(mm(0, 0, 28), [f'v_accvgpr_read_b32 v{T+i}, a{224+i}' for i in range(16)], ratio=1))
        side = ['s_nop 0'] * 4 + self.xchg1(ACC, ACC + 16) + ['s_nop 0'] * 6 + self.padd(ACC, ACC, ACC + 16) + self.padd(ACC, ACC, T)
        self.emit(merge(mm(1, 0, 20), side, ratio=2))
        self.emit(merge(mm(1, 20, 28), self.pf_w1y(), ratio=None))
        self.ts('g4_main')
        self.emit(self.xchg2(ACC + 32))
        self.emit(self.padd(ACC, ACC, ACC + 48) + self.padd(ACC, ACC, ACC + 32))
        self.emit([f'v_cvt_pk_bf16_f32 v{ACC+16+i}, v{ACC+2*i}, v{ACC+2*i+1}' for i in range(8)])
        FIN = a.label('final')
        a(f's_cmp_lg_u32 s16, 0\ns_cbranch_scc1 {FIN}')
        a(f'''
        s_add_u32 s15, s15, {LSTRIDE}
        s_lshl_b32 s62, s44, 15
        s_lshl_b32 s63, s51, 11
        s_add_u32 s62, s62, s63
        s_add_u32 s62, s62, s15
        ''')
        self.emit(self.sumsq(ACC, T))
        self.stat_off('s63', STX, 's15')
        self.stores([f'buffer_store_dwordx4 {vr(ACC+16)}, v1, s[4:7], s62 offen',
                     f'buffer_store_dwordx4 {vr(ACC+20)}, v1, s[4:7], s62 offen offset:1024',
                     f'buffer_store_dword v{T}, v1, s[4:7], s63 offen'])
        self.ts('g4_stored')
        self.publish(4)
        a('s_mov_b32 s16, 4')
        if self.opt.get('ts'): a('s_add_u32 s95, s95, 128')
        a(f's_branch {LOOP}')
        a(f'{FIN}:')
        p = ACC + 16
        a(f'''
        s_nop 1
        v_permlane32_swap_b32 v{p}, v{p+2}
        v_permlane32_swap_b32 v{p+1}, v{p+3}
        v_permlane32_swap_b32 v{p+4}, v{p+6}
        v_permlane32_swap_b32 v{p+5}, v{p+7}
        s_lshl_b32 s62, s44, 15
        s_lshl_b32 s63, s51, 6
        s_add_u32 s62, s62, s63
        buffer_store_dwordx4 {vr(p)}, v9, s[8:11], s62 offen
        buffer_store_dwordx4 {vr(p+4)}, v9, s[8:11], s62 offen offset:32
        ''')
        if self.opt.get('ts'):
            self.ts_n -= 1; self.opt['ts_names'].pop()
            a('s_waitcnt vmcnt(0)')
            self.ts('g4_stored')
```

```python
UR = 0x0
YP = 0x200000
LBASE = 0x400000
LSTRIDE = 0x1000000
XP = 0x0
HS = 0x200000
X1P = 0x400000
H2P = 0x600000
STX = 0xD00000
ST1 = 0xD40000
STA = 0xD80000
SH = 0xDC0000
WP1 = 0x2400000
WP2 = 0x2480000
WP3 = 0x2500000
WP4 = 0x2700000
FLAGS = 0x2900000
XT = 0x2901000
TS = 0x2A00000
WS_BYTES = 268435456
OOB = 0x80000000
```

```python
import sys, json
from asmx import Asm
from k0 import gen_k0, K0_LDS
from k1 import K1, K1_LDS
NAME = 'interleave_layers__ssm_conv_h3__mixer_s_mlp__prompt'
def build(opt, path):
    a = Asm()
    gen_k0(a, 'conv_kernel', opt)
    K1(a, opt).gen(NAME + '_kernel')
    hdr = ['; generated by gen/gen.py',
           f'; @launch kernel=conv_kernel grid=(256,1,1) block=(512,1,1) lds={K0_LDS}',
           f'; @launch kernel={NAME}_kernel grid=(256,1,1) block=(256,1,1) lds={K1_LDS}']
    open(path, 'w').write(a.text(hdr))
if __name__ == '__main__':
    opt = json.loads(sys.argv[2]) if len(sys.argv) > 2 else {}
    build(opt, sys.argv[1])
    if opt.get('ts'): json.dump(opt['ts_names'], open(sys.argv[1] + '.ts.json', 'w'))
```

```python
import re

_REG = re.compile(r'(?<![\w.])([vas])\[(\d+):(\d+)\]|(?<![\w.\[])([vas])(\d+)(?![\w\]])|(?<![\w.])(vcc|exec|m0|scc)(?![\w])')
TRANS = ('v_exp_f32', 'v_log_f32', 'v_rcp_f32', 'v_rsq_f32', 'v_sqrt_f32', 'v_sin_f32', 'v_cos_f32')


def regs_of(op):
    out = set()
    for m in _REG.finditer(op):
        if m.group(1):
            for i in range(int(m.group(2)), int(m.group(3)) + 1):
                out.add(m.group(1) + str(i))
        elif m.group(4):
            out.add(m.group(4) + m.group(5))
        else:
            out.add(m.group(6))
    return out


class Ins:
    __slots__ = ('text', 'mn', 'ops', 'wr', 'rd', 'kind', 'tags', 'srcc', 'srcab', 'passes', 'wide_store', 'tw', 'tr')

    def __init__(self, text):
        self.text = text
        code, _, cmt = text.partition(';')
        self.tags = set(re.findall(r'@(\w+)(?![\w=])', cmt))
        self.tw = set(re.findall(r'@w=(\w+)', cmt)); self.tr = set(re.findall(r'@r=(\w+)', cmt))
        code = code.strip()
        self.wr, self.rd = set(), set()
        self.srcc, self.srcab, self.passes, self.wide_store = set(), set(), 0, set()
        if code.startswith('.touch'):
            self.mn, self.ops, self.kind = '.touch', [], 'vmem'
            self.rd = regs_of(code[6:]); self.tags.add('pseudo')
            return
        if not code or code.endswith(':') or code.startswith('.'):
            self.mn, self.ops, self.kind = code, [], 'label' if code.endswith(':') else 'none'
            return
        parts = code.split(None, 1)
        mn = self.mn = parts[0]
        rest = parts[1] if len(parts) > 1 else ''
        rest_nomod = re.sub(r'\b(op_sel|op_sel_hi|neg_lo|neg_hi):\[[^\]]*\]', '', rest)
        ops = self.ops = [o.strip() for o in rest_nomod.split(',')]
        R = [regs_of(o) for o in ops]
        allr = set().union(*R) if R else set()
        if mn.startswith('v_mfma'):
            self.kind = 'mfma'
            self.wr = R[0]; self.srcab = R[1] | R[2]; self.srcc = R[3]; self.rd = self.srcab | self.srcc
            self.passes = 8 if '32x32' in mn else 4
        elif mn.startswith(('global_load', 'buffer_load')):
            self.kind = 'vmem'
            if '_lds_' in mn or re.search(r'\blds\b', rest):
                self.rd = allr | {'m0'}; self.tags.add('dma')
            else:
                self.wr = R[0]; self.rd = set().union(*R[1:])
        elif mn.startswith(('global_store', 'buffer_store')):
            self.kind = 'vmem'; self.rd = allr
            if mn.endswith(('x3', 'x4')):
                self.wide_store = R[1] if mn.startswith('global') else R[0]
        elif mn.startswith(('global_atomic', 'buffer_atomic')):
            self.kind = 'vmem'
            if 'sc0' in rest and mn.startswith('global'):
                self.wr = R[0]; self.rd = set().union(*R[1:])
            else:
                self.rd = allr
        elif mn.startswith(('buffer_inv', 'buffer_wbl2')):
            self.kind = 'vmem'
        elif mn.startswith('ds_'):
            self.kind = 'ds'
            if mn.startswith(('ds_read', 'ds_bpermute', 'ds_permute', 'ds_swizzle')) or '_rtn' in mn:
                self.wr = R[0]; self.rd = set().union(*R[1:])
            else:
                self.rd = allr
        elif mn.startswith(('s_load', 's_buffer_load', 's_memtime', 's_memrealtime')):
            self.kind = 'smem'; self.wr = R[0]; self.rd = set().union(*R[1:]) if len(R) > 1 else set()
        elif mn.startswith('v_'):
            self.kind = 'valu'
            if mn.startswith('v_permlane') and 'swap' in mn:
                self.wr = allr; self.rd = allr
            elif mn.startswith('v_nop'):
                pass
            else:
                self.wr = set(R[0]); self.rd = set().union(*R[1:]) if len(R) > 1 else set()
                if mn.startswith(('v_fmac', 'v_dot2c', 'v_writelane')) or '_dpp' in mn or '_sdwa' in mn:
                    self.rd |= R[0]
                if '_co_' in mn:
                    self.wr |= R[1]
                if mn.startswith('v_cmpx'):
                    self.wr.add('exec')
        elif mn.startswith('s_'):
            self.kind = 'salu'
            if mn.startswith(('s_cmp', 's_cbranch', 's_branch', 's_waitcnt', 's_nop', 's_barrier', 's_endpgm', 's_sleep', 's_setprio', 's_setpc', 's_bitcmp')):
                self.rd = allr
            else:
                self.wr = set(R[0]); self.rd = set().union(*R[1:]) if len(R) > 1 else set()
                if 'saveexec' in mn:
                    self.wr.add('exec')
        else:
            raise ValueError('unknown instr ' + text)


def _isv(r):
    return r[0] in 'va' and r[1:].isdigit()


def _iss(r):
    return (r[0] == 's' and r[1:].isdigit()) or r == 'vcc'


def need_states(p, c):
    n = 0
    ctouch = c.rd | c.wr
    if p.kind == 'valu':
        pv = {r for r in p.wr if _isv(r)}
        ps = {r for r in p.wr if _iss(r)}
        if c.kind == 'mfma' and pv & c.rd: n = max(n, 2)
        if c.kind == 'mfma' and re.search(r'op_sel:\[\d,[\d,]*1', p.text): n = max(n, 1)
        if c.kind == 'valu':
            if (c.mn.startswith('v_permlane') or '_dpp' in c.mn) and pv & c.rd: n = max(n, 2)
            if c.mn.startswith(('v_readlane', 'v_readfirstlane')) and pv & c.rd: n = max(n, 1)
            if p.mn.startswith(TRANS) and pv & c.rd: n = max(n, 1)
            if ps & c.rd: n = max(n, 4 if c.mn.startswith(('v_readlane', 'v_writelane')) else 2)
            if '_sdwa' in p.mn and pv & ctouch: n = max(n, 1)
            if 'exec' in p.wr: n = max(n, 5)
        if c.kind == 'mfma' and 'exec' in p.wr: n = max(n, 4)
        if c.kind == 'vmem' and ps & c.rd: n = max(n, 5)
        if c.kind in ('salu', 'smem') and ps & c.rd: n = max(n, 1)
        if p.mn.startswith(TRANS) and c.kind in ('vmem', 'ds') and pv & c.rd: n = max(n, 1)
    elif p.kind == 'mfma':
        big = p.passes == 8
        if c.kind == 'mfma':
            if p.wr & c.srcab: n = max(n, 12 if big else 8)
            if p.wr & c.srcc and not (p.wr == c.srcc and p.passes == c.passes): n = max(n, 10 if big else 6)
            if p.wr & c.wr and not (p.wr == c.wr and p.passes == c.passes): n = max(n, 12 if big else 8)
        elif c.kind in ('valu', 'vmem', 'ds'):
            if p.wr & ctouch: n = max(n, 12 if big else 8)
            if c.kind == 'valu' and p.srcc & c.wr: n = max(n, 7 if big else 3)
    elif p.kind == 'salu':
        if 'm0' in p.wr and 'dma' in c.tags: n = max(n, 1)
    elif p.kind == 'vmem':
        if p.wide_store & c.wr: n = max(n, 2)
    return n


class Asm:
    def __init__(self):
        self.items = []
        self.kernels = []
        self._lbl = 0

    def __call__(self, s, tag=None):
        for l in s.split('\n'):
            l = l.strip()
            if not l: continue
            if tag and not l.endswith(':'):
                l = l + (' ' if ';' in l else ' ; ') + '@' + tag
            self.items.append(Ins(l))

    def label(self, base='L'):
        self._lbl += 1
        return f'{base}_{self._lbl}'

    def begin_kernel(self, name):
        self(f'.globl {name}\n.p2align 8\n.type {name},@function\n{name}:')
        self.items[-1].tags.add('reset')

    def end_kernel(self, name, vgpr, sgpr=102, agpr=0):
        accum = (vgpr + 3) // 4 * 4
        self.kernels.append((name, accum + agpr if agpr else vgpr, sgpr, accum))

    def _waitcnt(self):
        out = []
        vm, lg = [], []
        saved = None
        run = 0

        def younger(q, idx):
            return sum(1 for e in q[idx + 1:] if e[1] or (saved is not None and e[3] == run))

        def trim(q, n):
            keep, cnt = [], 0
            for e in reversed(q):
                if cnt >= n: break
                keep.append(e)
                if e[1] or (saved is not None and e[3] == run): cnt += 1
            return keep[::-1]
        for ins in self.items:
            if 'reset' in ins.tags:
                vm, lg, saved = [], [], None
            if ins.kind in ('none', 'label'):
                out.append(ins); continue
            nc = 'nocount' in ins.tags
            if nc and saved is None:
                run += 1
                saved = (list(vm), list(lg))
            elif not nc and saved is not None:
                vm = saved[0] + [e for e in vm if e[3] == run]
                lg = saved[1] + [e for e in lg if e[3] == run]
                saved = None
            if ins.mn == 's_waitcnt':
                m = re.search(r'vmcnt\((\d+)\)', ins.text)
                if m: vm = trim(vm, int(m.group(1)))
                m = re.search(r'lgkmcnt\((\d+)\)', ins.text)
                if m: lg = trim(lg, int(m.group(1)))
                out.append(ins); continue
            touch = ins.rd if 'waw' in ins.tags else ins.rd | ins.wr
            wv = wl = None
            for i in range(len(vm) - 1, -1, -1):
                if vm[i][0] & touch or vm[i][4] & ins.tr:
                    wv = min(63, younger(vm, i)); vm = vm[i + 1:]; break
            for i in range(len(lg) - 1, -1, -1):
                if lg[i][0] & touch or lg[i][4] & ins.tw:
                    if any(e[2] for e in lg):
                        wl = 0; lg = []
                    else:
                        wl = min(15, younger(lg, i)); lg = lg[i + 1:]
                    break
            if wv is not None or wl is not None:
                t = 's_waitcnt' + (f' vmcnt({wv})' if wv is not None else '') + (f' lgkmcnt({wl})' if wl is not None else '')
                w = Ins(t)
                if nc: w.tags.add('nocount')
                out.append(w)
            if 'pseudo' in ins.tags:
                pass
            elif ins.kind == 'vmem':
                vm.append((set(ins.wr), not nc, False, run if nc else -1, ins.tw))
            elif ins.kind == 'ds':
                lg.append((set(ins.wr), not nc, False, run if nc else -1, ins.tr))
            elif ins.kind == 'smem':
                lg.append((set(ins.wr), not nc, True, run if nc else -1, set()))
            out.append(ins)
        self.items = out

    def _hazards(self):
        out = []
        hist = []
        for ins in self.items:
            if 'reset' in ins.tags:
                hist = []
            if ins.kind in ('none', 'label'):
                out.append(ins); continue
            need = 0
            dist = 0
            for p in reversed(hist):
                n = need_states(p, ins)
                if n > dist: need = max(need, n - dist)
                if 'nocount' not in p.tags or 'nocount' in ins.tags:
                    dist += (int(p.ops[0], 0) + 1) if p.mn == 's_nop' else 1
                if dist >= 20: break
            while need > 0:
                k = min(need, 16)
                nop = Ins(f's_nop {k - 1}')
                if 'nocount' in ins.tags: nop.tags.add('nocount')
                out.append(nop); hist.append(nop); need -= k
            if 'pseudo' in ins.tags: continue
            out.append(ins); hist.append(ins)
            if len(hist) > 64: hist = hist[-64:]
        self.items = out

    def text(self, header_lines):
        self._waitcnt()
        self._hazards()
        out = list(header_lines)
        out.append('.amdgcn_target "amdgcn-amd-amdhsa--gfx950"')
        out.append('.text')
        for i in self.items:
            t = re.sub(r'\s*;.*$', '', i.text)
            out.append(t)
        out.append('.section .rodata,"a"')
        for name, v, s, a in self.kernels:
            out.append('.p2align 6')
            out.append(f'.amdhsa_kernel {name}')
            out.append(f'  .amdhsa_next_free_vgpr {v}')
            out.append(f'  .amdhsa_next_free_sgpr {s}')
            out.append(f'  .amdhsa_accum_offset {a}')
            out.append('  .amdhsa_group_segment_fixed_size 0')
            out.append('  .amdhsa_kernarg_size 112')
            out.append('  .amdhsa_user_sgpr_count 2')
            out.append('  .amdhsa_user_sgpr_kernarg_segment_ptr 1')
            out.append('  .amdhsa_system_sgpr_workgroup_id_x 1')
            out.append('.end_amdhsa_kernel')
        return '\n'.join(out) + '\n'


def merge(main, side, ratio=None):
    slots = [i for i, s in enumerate(main) if s.startswith('v_mfma')]
    out = []
    n = len(slots); k = 0; done = 0
    for i, s in enumerate(main):
        out.append(s)
        if s.startswith('v_mfma'):
            k += 1
            upto = len(side) * k // n if ratio is None else min(len(side), int(ratio * k))
            out += side[done:upto]; done = max(done, upto)
    out += side[done:]
    return out
```

```python
from layout import *
from asmx import merge
import struct

L_W3 = 0
L_RED = 114688
L_CS1 = 159744
L_CS3 = L_CS1 + 1024
L_BC = L_CS1 + 1536
LDS = 163840
HS_ = 260 * 16
L_H = 0
L_U = 16 * HS_
U_ = 286 * 16
L_STG = 75776
L_P = 0
L_STG2 = 32768

RS, YR, ACC, XR = 24, 40, 48, 112
NRING = 12


def f2u(x):
    return struct.unpack('<I', struct.pack('<f', x))[0]


def vr(b, n=4, c='v'):
    return f'{c}[{b}:{b+n-1}]'


def wreg(mat, ks, sl):
    i = (ks * 2 + sl) * 4
    if mat == 1: return 'v', 160 + i
    if mat == 2: return ('v', 224 + i) if ks < 4 else ('a', 224 + i - 32)
    return 'a', i


def wfrag(mat, ks, sl):
    c, b = wreg(mat, ks, sl)
    return vr(b, 4, c)


def chunk(c):
    return (1, c) if c < 4 else (2, c - 4) if c < 8 else (4, c - 8)


K1C = -2 * 0.7978845608028654 * 1.4426950408889634
K3C = K1C * 0.044715


class K:
    def __init__(self, a, opt):
        self.a = a
        self.opt = opt
        self.mode = opt.get('mode', 'dual')
        self.spin = opt.get('spin', 200000)
        self.tsn = opt.setdefault('ts_names', [])
        self.l = None
        self.sched = opt['sched']

    def emit(self, lst, tag=None):
        for l in lst: self.a(l, tag=tag)

    def cond(self, test, body):
        a = self.a
        L = a.label('skip')
        a(f'{test}\ns_cbranch_scc1 {L}')
        n0 = len(a.items)
        if callable(body): body()
        else: self.emit(body)
        for i in a.items[n0:]: i.tags.add('nocount')
        a(f'{L}:')

    def srd(self, d, ptr, nbytes):
        return [f's_mov_b32 s{d}, s{ptr}', f's_mov_b32 s{d+1}, s{ptr+1}', f's_mov_b32 s{d+2}, {nbytes}', f's_mov_b32 s{d+3}, 0x00020000']

    def ts(self, name, real=False):
        if not self.opt.get('ts'): return
        n = len(self.tsn); self.tsn.append(name if self.l is None else f'{self.l}.{name}')
        assert n < 64
        self.a(f'''
        {'s_memrealtime' if real else 's_memtime'} s[96:97]
        s_waitcnt lgkmcnt(0)
        v_writelane_b32 v9, s96, {n}
        ''')

    def stores(self, lst, tok):
        for l in lst: self.a(l + self.sc + f' ; @w={tok}')

    def publish(self, phase, tok='ST'):
        a = self.a
        a(f'v_mov_b32 v15, {phase + 8 * self.l}')
        a(f'.touch ; @r={tok}')
        a('s_mov_b64 exec, 1')
        self.stores(['buffer_store_dword v15, v2, s[4:7], s45 offen'], 'FLG')
        a('s_mov_b64 exec, -1')

    def poll(self, mask, phase):
        a = self.a
        P = a.label('poll')
        a(f'''
        s_mov_b32 s61, 0
        {P}:
        buffer_load_dword v15, v2, s[4:7], s37 offen sc1
        s_add_u32 s61, s61, 1
        s_waitcnt vmcnt(0)
        v_cmp_gt_u32 vcc, {phase + 8 * self.l}, v15
        s_cmp_gt_u32 s61, {self.spin}
        s_cbranch_scc1 {P}_x
        s_and_b64 vcc, vcc, {mask}
        s_cbranch_scc1 {P}
        {P}_x:
        ''')

    def maxchain(self, d, regs):
        o = [f'v_max3_u32 v{d}, v{regs[0]}, v{regs[1]}, v{regs[2]}']
        r = regs[3:]
        while len(r) >= 2:
            o.append(f'v_max3_u32 v{d}, v{d}, v{r[0]}, v{r[1]}'); r = r[2:]
        if r: o.append(f'v_max_u32 v{d}, v{d}, v{r[0]}')
        return o

    def add(self, d, x, y, n=16, pk=True):
        if pk: return [f'v_pk_add_f32 {vr(d+i,2)}, {vr(x+i,2)}, {vr(y+i,2)}' for i in range(0, n, 2)]
        return [f'v_add_f32 v{d+i}, v{x+i}, v{y+i}' for i in range(n)]

    def unpack(self, src, dst, n):
        o = []
        for i in range(n):
            o += [f'v_lshlrev_b32 v{dst+2*i}, 16, v{src+i}', f'v_and_b32 v{dst+2*i+1}, s36, v{src+i}']
        return o

    def redstats(self, src, pk=True):
        if pk:
            o = self.add(src, src, src + 8, 8) + self.add(src, src, src + 4, 4) + self.add(src, src, src + 2, 2)
        else:
            o = self.add(src, src, src + 8, 8, False) + self.add(src, src, src + 4, 4, False) + self.add(src, src, src + 2, 2, False)
        o += [f'v_add_f32 v{src}, v{src}, v{src+1}',
              f'v_mul_f32 v{src}, {hex(f2u(1/512))}, v{src}',
              f'v_mov_b32 v{src+1}, v{src}',
              f'v_permlane32_swap_b32 v{src}, v{src+1}',
              f'v_fma_f32 v{src+1}, -v{src}, v{src}, v{src+1}',
              f'v_max_f32 v{src+1}, 0, v{src+1}',
              f'v_add_f32 v{src+2}, {hex(f2u(1e-5))}, v{src+1}',
              f'v_rsq_f32 v{src+2}, v{src+2}']
        return o

    def sumsq(self, x, t, n=16):
        o = [f'v_pk_add_f32 {vr(t,2)}, {vr(x,2)}, {vr(x+2,2)}', f'v_pk_mul_f32 {vr(t+2,2)}, {vr(x,2)}, {vr(x,2)}']
        for i in range(2, n, 2):
            if i > 2: o.append(f'v_pk_add_f32 {vr(t,2)}, {vr(t,2)}, {vr(x+i,2)}')
            o.append(f'v_pk_fma_f32 {vr(t+2,2)}, {vr(x+i,2)}, {vr(x+i,2)}, {vr(t+2,2)}')
        o += [f'v_add_f32 v{t}, v{t}, v{t+1}', f'v_add_f32 v{t+2}, v{t+2}, v{t+3}',
              f'v_permlane32_swap_b32 v{t}, v{t+2}', f'v_add_f32 v{t}, v{t}, v{t+2}']
        return o

    def gelu_consts(self, c, kp, rp):
        return [f'v_mul_f32 v{kp+1}, {hex(f2u(K1C))}, v{c}', f'v_mul_f32 v{kp}, v{c}, v{c}', f'v_rcp_f32 v{rp}, v{c}',
                f'v_mul_f32 v{kp}, v{kp}, v{kp+1}', f'v_mul_f32 v{kp}, {hex(f2u(0.044715))}, v{kp}']

    def gelu(self, items, tmp):
        o = []
        T = [tmp + 2 * i for i in range(len(items))]
        for (z, kp, rp, d), t in zip(items, T): o.append(f'v_pk_mul_f32 {vr(t,2)}, {vr(z,2)}, {vr(z,2)}')
        for (z, kp, rp, d), t in zip(items, T): o.append(f'v_pk_fma_f32 {vr(t,2)}, {vr(t,2)}, {vr(kp,2)}, {vr(kp,2)} op_sel:[0,0,1] op_sel_hi:[1,0,1]')
        for (z, kp, rp, d), t in zip(items, T): o.append(f'v_pk_mul_f32 {vr(t,2)}, {vr(t,2)}, {vr(z,2)}')
        for t in T: o += [f'v_exp_f32 v{t}, v{t}', f'v_exp_f32 v{t+1}, v{t+1}']
        for (z, kp, rp, d), t in zip(items, T): o.append(f'v_pk_fma_f32 {vr(t,2)}, {vr(t,2)}, {vr(rp-1,2)}, {vr(rp-1,2)} op_sel:[0,1,1] op_sel_hi:[1,1,1]')
        for t in T: o += [f'v_rcp_f32 v{t}, v{t}', f'v_rcp_f32 v{t+1}, v{t+1}']
        for (z, kp, rp, d), t in zip(items, T): o.append(f'v_pk_mul_f32 {vr(t,2)}, {vr(t,2)}, {vr(z,2)}')
        for (z, kp, rp, d), t in zip(items, T): o.append(f'v_cvt_pk_bf16_f32 v{d}, v{t}, v{t+1}')
        return o

    def blk_write(self, acc, vaddr, off):
        return [f'ds_write_b128 {vaddr}, {vr(acc+4*g)} offset:{off+g*1024}' for g in range(4)]

    def blk_read(self, dst, vaddr, off):
        return [f'ds_read_b128 {vr(dst+4*g)}, {vaddr} offset:{off+g*1024}' for g in range(4)]

    def xchg1(self):
        o = ['v_sub_u32 v15, v12, v10', 'v_add_u32 v15, v15, v13']
        o += self.blk_write(ACC, 'v12', 0) + self.blk_write(ACC + 16, 'v15', 4096)
        o += ['s_waitcnt lgkmcnt(0)', 's_barrier']
        o += self.blk_read(ACC, 'v10', 0) + self.blk_read(ACC + 16, 'v10', 4096)
        return o

    def xchg2(self):
        o = self.blk_write(ACC + 32, 'v10', 0)
        o += ['s_waitcnt lgkmcnt(0)', 's_barrier']
        o += self.blk_read(ACC + 32, 'v13', 0)
        return o

    def slot_addr(self, t):
        return (L_STG + t * 4096, 's46') if t < 5 else (L_STG2 + (t - 5) * 4096, 's47')

    def w_issue(self, c, t):
        mat, cc = chunk(c)
        sr = {1: 's[84:87]', 2: 's[88:91]', 4: 's[52:55]'}[mat]
        base, sw = self.slot_addr(t)
        o = [f's_add_u32 m0, {sw}, {base}', f's_add_u32 s62, {"s49" if mat == 4 else "s48"}, {cc*32768}']
        for i in range(4):
            if i: o.append('s_add_u32 s62, s62, 7168')
            o.append(f'buffer_load_dwordx4 v3, {sr}, s62 offen offset:{i*1024} lds ; @w=S{t}')
        return o

    def w_consume(self, c, t):
        mat, cc = chunk(c)
        va, off = ('v4', t * 4096) if t < 5 else ('v5', (t - 5) * 4096)
        o = []
        for i in range(4):
            for sl in range(2):
                cl, b = wreg(mat, 2 * cc + i // 2, sl)
                o.append(f'ds_read_b64_tr_b16 {vr(b + 2 * (i % 2), 2, cl)}, {va} offset:{off + i*1024 + sl*512} ; @r=S{t}')
        return o

    def wpoint(self, name):
        o = []
        for ev in self.sched.get(name, []):
            o += self.w_issue(ev[1], ev[2]) if ev[0] == 'i' else self.w_consume(ev[1], ev[2])
        return o

    def w3_issue(self, u0, u1, vt):
        o = [f'v_lshrrev_b32 v{vt}, 4, v1', f'v_mul_u32_u24 v{vt}, 4682, v{vt}', f'v_lshrrev_b32 v{vt}, 16, v{vt}',
              f'v_mul_u32_u24 v{vt}, {3584 - 224}, v{vt}', f'v_add_u32 v{vt}, v{vt}, v1',
              f's_mul_i32 s62, s12, 14336', f's_mul_i32 s63, s13, 224', 's_add_u32 s62, s62, s63', f's_add_u32 s62, s62, {u0*4*14336}',
              f's_mul_i32 s63, s12, 896', f's_add_u32 s63, s63, {L_W3 + u0*3584}',
              's_mov_b32 exec_hi, 0x00ffffff']
        for u in range(u0, u1):
            o += ['s_mov_b32 m0, s63', 's_add_u32 s63, s63, 3584',
                  f'buffer_load_dwordx4 v{vt}, s[56:59], s62 offen lds ; @w=W3', f's_add_u32 s62, s62, {4*14336}']
        o += ['s_mov_b32 exec_hi, -1']
        return o

    def pretouch(self, off, nbytes, dst):
        if self.l or not self.opt.get('pt', 1): return []
        n = nbytes // 64 // 128; vt = dst
        return [f'v_lshlrev_b32 v{vt}, 3, v1', 's_lshl_b32 s62, s13, 2', 's_add_u32 s62, s62, s12', f's_mul_i32 s62, s62, {n*128}',
                's_add_u32 s62, s62, s15', f's_add_u32 s62, s62, {off}', f's_mov_b64 exec, {hex((1 << n) - 1)}' if n <= 32 else f's_mov_b32 exec_hi, {hex((1 << (n - 32)) - 1)}',
                f'buffer_load_dword v{dst}, v{vt}, s[4:7], s62 offen sc1', 's_mov_b64 exec, -1']

    def gen(self, name):
        a = self.a
        a.begin_kernel(name)
        self.END = a.label('end'); self.CODE_END = a.label('fast_end'); SLOW = a.label('slow')
        self.front(name)
        a(f's_waitcnt vmcnt(0)\ns_cmp_eq_u32 s17, 0\ns_cbranch_scc1 {SLOW}')
        n0 = len(self.tsn)
        for self.sc in ('', ' sc1'):
            del self.tsn[n0:]
            for self.l in range(self.opt.get('nl', 2)):
                self.p0(); self.g1(); self.g2(); self.g3(); self.g4()
            if not self.sc:
                a(f'{self.CODE_END}:\ns_endpgm\n{SLOW}:')
                a.items[-1].tags.add('reset')
        a(f'{self.END}:\ns_endpgm')
        a.end_kernel(name, vgpr=256, sgpr=102, agpr=256)

    def front(self, name):
        a = self.a
        a(f'''
        s_cmp_ge_u32 s2, 256
        s_cbranch_scc1 {self.END}
        s_load_dwordx2 s[72:73], s[0:1], 8
        s_load_dwordx2 s[76:77], s[0:1], 16
        s_load_dwordx2 s[4:5], s[0:1], 104
        s_load_dwordx2 s[98:99], s[0:1], 24
        s_load_dwordx2 s[80:81], s[0:1], 32
        s_getpc_b64 s[64:65]
        pc_here:
        v_lshrrev_b32 v16, 6, v0
        v_and_b32 v20, 15, v0
        v_lshl_add_u32 v20, v16, 4, v20
        v_lshlrev_b32 v20, 7, v20
        global_load_dword v79, v20, s[64:65]
        s_load_dwordx2 s[92:93], s[0:1], 96
        s_load_dwordx2 s[94:95], s[0:1], 0
        s_load_dwordx2 s[100:101], s[0:1], 40
        s_load_dwordx2 s[84:85], s[0:1], 56
        s_load_dwordx2 s[88:89], s[0:1], 64
        s_load_dwordx2 s[56:57], s[0:1], 72
        s_load_dwordx2 s[52:53], s[0:1], 80
        s_load_dwordx2 s[8:9], s[0:1], 88
        ''')
        if self.opt.get('scramble'):
            a('s_lshr_b32 s60, s2, 5\ns_lshl_b32 s2, s2, 3\ns_and_b32 s2, s2, 0xff\ns_or_b32 s2, s2, s60')
        a(f'''
        v_and_b32 v17, 63, v0           ; lane
        v_readfirstlane_b32 s12, v16
        v_lshlrev_b32 v1, 4, v17
        v_lshlrev_b32 v2, 2, v17
        s_and_b32 s18, s2, 7            ; xg
        s_lshr_b32 s19, s2, 3           ; rk
        v_and_b32 v18, 7, v17           ; rg
        v_lshrrev_b32 v19, 3, v0        ; cp
        v_lshlrev_b32 v20, 13, v18
        v_lshl_add_u32 v20, v19, 2, v20
        s_lshl_b32 s60, s19, 16
        s_lshl_b32 s61, s18, 7
        s_add_u32 s60, s60, s61
        v_add_u32 v20, s60, v20
        v_subrev_u32 v21, 0xc00, v20
        s_movk_i32 s63, 0x1000
        s_and_b32 s13, s19, 15          ; idx16
        s_lshr_b32 s60, s19, 4
        s_lshl_b32 s14, s18, 1
        s_add_u32 s14, s14, s60         ; sg
        s_lshl_b32 s15, s14, 20
        s_add_u32 s15, s15, {SG0}       ; SGB
        s_lshl_b32 s39, s18, 21
        s_add_u32 s39, s39, {SG0 + UFL}
        s_lshl_b32 s50, s18, 5
        s_add_u32 s50, s50, s19
        s_mov_b32 s6, {WS_BYTES}
        s_mov_b32 s7, 0x00020000
        s_mov_b32 s74, 2097152
        s_mov_b32 s75, 0x00020000
        s_mov_b32 s78, 2097152
        s_mov_b32 s79, 0x00020000
        s_mov_b32 s82, 2097152
        s_mov_b32 s83, 0x00020000
        v_lshlrev_b32 v14, 7, v17       ; lane*128
        v_mov_b32 v48, 0
        v_mov_b32 v49, 0
        v_mov_b32 v50, 0
        v_mov_b32 v51, 0
        s_lshl_b32 s60, s13, 4
        s_add_u32 s60, s60, s15
        s_add_u32 s60, s60, {FL}
        s_lshl_b32 s61, s19, 2
        s_add_u32 s61, s61, s39
        v_lshlrev_b32 v22, 4, v19
        s_lshl_b32 s62, s18, 9
        v_add_u32 v22, s62, v22
        v_mov_b32 v9, 0
        s_waitcnt lgkmcnt(0)
        ''')
        self.ts('rt_start', True)
        self.ts('start')
        self.cond('s_cmp_lg_u32 s12, 0', f'''
            s_mov_b64 exec, 1
            buffer_store_dwordx4 v[48:51], v1, s[4:7], s60 offen sc1 ; @w=INIT
            s_mov_b64 exec, 0xff
            buffer_store_dword v48, v14, s[4:7], s61 offen sc1 ; @w=INIT
            s_mov_b64 exec, -1'''.split('\n'))
        KR = 60
        for i in range(3):
            a(f'buffer_load_dword v{KR+i}, v21, s[72:75], 0 offen offset:{i*1024}')
        for i in range(8):
            so = '0' if i < 4 else 's63'
            a(f'buffer_load_dword v{KR+3+i}, v20, s[72:75], {so} offen offset:{(i%4)*1024}')
            a(f'buffer_load_dword v{KR+11+i}, v20, s[76:79], {so} offen offset:{(i%4)*1024}')
        a('global_load_dwordx4 v[80:83], v22, s[98:99]')
        HR = 160
        a(f'''
        s_lshl_b32 s38, s18, 19
        s_add_u32 s38, s38, {UR0}
        s_lshl_b32 s60, s19, 13
        s_lshl_b32 s47, s12, 11
        s_add_u32 s60, s60, s47
        s_add_u32 s60, s60, s38
        s_mov_b64 exec, 0xffff
        buffer_load_dword v87, v14, s[4:7], s60 offen sc1
        s_mov_b64 exec, -1
        s_lshr_b32 s70, s12, 1
        s_and_b32 s71, s12, 1
        s_lshl_b32 s60, s50, 13
        s_add_u32 s67, s60, s47
        v_subrev_u32 v22, 16, v1
        v_lshl_add_u32 v22, s71, 11, v22
        s_andn2_b32 s61, s67, 0x800
        buffer_load_dwordx4 {vr(HR)}, v22, s[80:83], s61 offen
        buffer_load_dwordx4 {vr(HR+4)}, v1, s[80:83], s67 offen
        buffer_load_dwordx4 {vr(HR+8)}, v1, s[80:83], s67 offen offset:1008
        buffer_load_dwordx4 {vr(HR+12)}, v1, s[80:83], s67 offen offset:1024
        s_lshl_b32 s60, s50, 1
        s_add_u32 s60, s60, s70
        s_lshl_b32 s60, s60, 1
        v_mov_b32 v22, s60
        global_load_ushort v84, v22, s[100:101]
        s_lshr_b32 s20, s13, 3          ; mq
        s_and_b32 s21, s13, 7           ; ns
        s_lshl_b32 s44, s20, 1
        s_add_u32 s44, s44, s70
        s_lshl_b32 s51, s21, 1
        s_add_u32 s51, s51, s71
        v_and_b32 v16, 31, v17          ; m32
        v_lshrrev_b32 v23, 5, v17       ; q2
        v_lshlrev_b32 v22, 10, v16
        v_lshl_add_u32 v22, v23, 4, v22
        s_lshl_b32 s60, s14, 2
        s_add_u32 s60, s60, s44
        s_lshl_b32 s35, s60, 15
        s_lshl_b32 s61, s51, 6
        s_add_u32 s35, s35, s61
        s_lshl_b32 s34, s60, 7
        s_lshl_b32 s61, s51, 17
        s_add_u32 s34, s34, s61
        v_add_u32 v22, s35, v22
        global_load_dwordx4 {vr(YR)}, v22, s[94:95]
        global_load_dwordx4 {vr(YR+4)}, v22, s[94:95] offset:32
        s_and_b32 s60, s19, 7
        s_lshl_b32 s60, s60, 13
        s_add_u32 s60, s60, s47
        s_add_u32 s60, s60, 8192
        v_add_u32 v22, s60, v14
        v_min_u32 v22, {self.CODE_END}-pc_here, v22
        s_mov_b64 exec, 0xffff
        global_load_dword v86, v22, s[64:65]
        s_mov_b64 exec, -1
        ''')
        self.cond('s_cmp_lg_u32 s12, 0', f'''
            s_getreg_b32 s66, hwreg(HW_REG_XCC_ID)
            s_and_b32 s66, s66, 7
            s_lshl_b32 s66, s66, 3
            s_lshl_b64 s[64:65], 1, s66
            v_mov_b32 v52, s64
            v_mov_b32 v53, s65
            s_lshl_b32 s60, s18, 5
            v_mov_b32 v54, s60
            .touch ; @r=INIT
            s_mov_b64 exec, 1
            global_atomic_add_x2 v54, v[52:53], s[92:93] sc1
            s_mov_b64 exec, -1'''.split('\n'))
        self.setup_layers()
        a(f'''
        s_mov_b32 s86, {512*1024}
        s_mov_b32 s87, 0x00020000
        s_mov_b32 s90, {512*1024}
        s_mov_b32 s91, 0x00020000
        s_mov_b32 s54, {1792*1024}
        s_mov_b32 s55, 0x00020000
        s_mov_b32 s58, {1792*1024}
        s_mov_b32 s59, 0x00020000
        s_mov_b32 s10, 2097152
        s_mov_b32 s11, 0x00020000
        s_mov_b32 s36, 0xffff0000
        ''')
        if self.opt.get('mp', 1):
            a(f'''
            s_lshl_b32 s60, s2, 2
            s_add_u32 s60, s60, s12
            s_lshl_b32 s61, s60, 9
            s_mul_i32 s60, s60, {14*128}
            s_mov_b64 exec, 0xf
            buffer_load_dword v85, v14, s[84:87], s61 offen
            buffer_load_dword v85, v14, s[88:91], s61 offen ; @waw
            s_mov_b64 exec, 0x3fff
            buffer_load_dword v85, v14, s[52:55], s60 offen ; @waw
            buffer_load_dword v85, v14, s[56:59], s60 offen ; @waw
            s_mov_b64 exec, -1
            ''')
        a(f'''
        v_mov_b32 v52, -1
        v_mov_b32 v53, -1
        v_mov_b32 v54, -1
        v_mov_b32 v55, -1
        s_add_u32 s63, s42, {STX}
        s_add_u32 s62, s42, {STX + 16384}
        buffer_store_dwordx4 v[52:55], v1, s[4:7], s67 offen sc1 ; @w=INIT2
        buffer_store_dwordx4 v[52:55], v1, s[4:7], s67 offen offset:1024 sc1 ; @w=INIT2
        buffer_store_dword v52, v1, s[4:7], s63 offen sc1 ; @w=INIT2
        buffer_store_dword v52, v1, s[4:7], s62 offen sc1 ; @w=INIT2
        s_bfe_u32 s61, s13, 0x10002
        s_mul_i32 s61, s61, 15
        s_cmp_eq_u32 s61, s14
        s_cselect_b32 s61, 0, -1
        v_mov_b32 v56, s61
        s_lshl_b32 s60, s13, 11
        s_lshl_b32 s61, s70, 10
        s_add_u32 s60, s60, s61
        s_lshl_b32 s61, s71, 6
        s_add_u32 s60, s60, s61
        s_add_u32 s60, s60, s15
        s_add_u32 s60, s60, {SH}
        s_mov_b64 exec, 0xffff
        buffer_store_dword v56, v2, s[4:7], s60 offen sc1 ; @w=INIT2
        s_mov_b64 exec, -1
        ''')
        a(f'''
        v_bfe_u32 v3, v17, 2, 3
        v_lshlrev_b32 v3, 10, v3
        v_xor_b32 v22, s71, v23
        v_lshl_add_u32 v3, v22, 6, v3
        v_and_b32 v22, 3, v17
        v_lshl_add_u32 v3, v22, 4, v3
        s_lshl_b32 s60, s21, 7
        v_add_u32 v3, s60, v3
        s_lshl_b32 s48, s12, 17
        s_mul_i32 s49, s12, {448*1024}
        s_mul_i32 s46, s12, 20480
        s_lshl_b32 s47, s12, 13
        ''')
        self.emit(self.wpoint('t0'))
        a(f'''
        v_lshlrev_b32 v4, 8, v23
        v_lshl_add_u32 v4, v22, 3, v4
        v_bfe_u32 v22, v17, 2, 2
        v_lshl_add_u32 v4, v22, 6, v4
        v_bfe_u32 v22, v17, 4, 1
        v_lshl_add_u32 v4, v22, 5, v4
        s_add_u32 s60, s47, {L_STG2}
        v_add_u32 v5, s60, v4
        s_add_u32 s60, s46, {L_STG}
        v_add_u32 v4, s60, v4
        v_min_u32 v22, 29, v16
        v_lshlrev_b32 v22, 4, v22
        v_mul_u32_u24 v21, {U_}, v23
        v_add_u32 v22, v22, v21
        v_add_u32 v22, {L_U}, v22
        ds_write_b128 v22, v[48:51] offset:4096
        v_and_b32 v20, 15, v17          ; b / a
        v_mul_u32_u24 v22, {HS_}, v20
        ds_write_b128 v22, v[48:51]
        v_lshrrev_b32 v19, 3, v0
        v_and_b32 v18, 7, v17
        v_lshlrev_b32 v6, 13, v19
        v_lshlrev_b32 v22, 4, v18
        v_sub_u32 v6, v6, v22
        s_lshl_b32 s61, s19, 7
        s_sub_u32 s60, {255*16}, s61
        v_add_u32 v6, s60, v6
        v_lshrrev_b32 v21, 4, v17       ; q4
        v_mul_u32_u24 v7, {HS_}, v18
        v_lshrrev_b32 v22, 3, v20
        v_add_u32 v22, v22, v21
        v_lshl_add_u32 v7, v22, 4, v7
        s_mul_i32 s60, s70, {8*HS_}
        s_lshl_b32 s61, s71, 11
        s_add_u32 s62, s60, s61
        v_add_u32 v10, s62, v1
        s_lshl_b32 s61, s71, 8
        s_add_u32 s60, s60, s61
        v_add_u32 v7, s60, v7           ; A address
        v_lshlrev_b32 v22, 1, v20
        v_sub_u32 v22, v21, v22
        v_lshlrev_b32 v22, 4, v22
        s_mul_i32 s60, s70, {U_}
        s_add_u32 s60, s60, s61
        s_add_u32 s60, s60, {L_U + 30*16}
        v_add_u32 v8, s60, v22          ; B address
        v_lshlrev_b32 v11, 6, v20
        v_lshl_add_u32 v11, v21, 4, v11
        s_add_u32 s60, s38, 4096
        s_add_u32 s61, s38, 0x40000
        s_add_u32 s62, s38, 0x41000
        s_lshl_b32 s63, s18, 5
        v_mov_b32 v12, s63
        ''')
        self.ts('issued')
        TP, KF, VF, U, UO = 88, 96, 118, 134, 152
        for j in range(4):
            for c in range(2):
                src = 80 + c * 2 + j // 2
                if j % 2 == 0: a(f'v_lshlrev_b32 v{TP+2*j+c}, 16, v{src}')
                else: a(f'v_and_b32 v{TP+2*j+c}, s36, v{src}')
        self.ts('kv')
        self.emit(self.unpack(KR, KF, 11) + self.unpack(KR + 11, VF, 8))
        for t in range(8):
            d = vr(U + 2 * t, 2)
            kk = lambda r: vr(KF + 2 * (r + 3), 2)
            a(f'v_pk_mul_f32 {d}, {kk(t-3)}, {vr(TP+6,2)}')
            for j in (2, 1, 0):
                a(f'v_pk_fma_f32 {d}, {kk(t-j)}, {vr(TP+2*j,2)}, {d}')
        for t in range(8):
            a(f'v_pk_mul_f32 {vr(U+2*t,2)}, {vr(U+2*t,2)}, {vr(VF+2*t,2)}')
        for c in range(2):
            for dd in range(4):
                a(f'v_cvt_pk_bf16_f32 v{UO+4*c+dd}, v{U+2*(7-2*dd)+c}, v{U+2*(6-2*dd)+c}')
        a(f'''
        buffer_store_dwordx4 {vr(UO)}, v6, s[4:7], s38 offen ; @w=UP
        buffer_store_dwordx4 {vr(UO+4)}, v6, s[4:7], s60 offen ; @w=UP
        buffer_store_dwordx4 {vr(UO)}, v6, s[4:7], s61 offen sc1 ; @w=US
        buffer_store_dwordx4 {vr(UO+4)}, v6, s[4:7], s62 offen sc1 ; @w=US
        ''')
        self.cond('s_cmp_lg_u32 s12, 0', ['global_load_dwordx2 v[18:19], v12, s[92:93] sc1'])
        a('.touch ; @r=INIT2\ns_barrier')
        self.ts('barA')

        def hrow(r):
            R, T = HR + 8 * r, 96 + 18 * r
            o = [f'v_mov_b32 v{T+m}, v{R+1+m}' for m in range(6)]
            o += [f'v_alignbit_b32 v{T+6+m}, v{R+m+1}, v{R+m}, 16' for m in range(6)]
            o += [f'v_alignbit_b32 v{T+12+m}, v{R+m+2}, v{R+m+1}, 16' for m in range(6)]
            src = {1: T + 6, 2: T, 3: T + 12, 4: R + 2, 5: T + 8, 6: T + 2, 7: T + 14, 8: R + 4}
            o += [f'ds_write_b128 v10, {vr(src[e])} offset:{(e-1)*HS_ + 16 + r*1024}' for e in (8, 4, 2, 6, 1, 5, 3, 7)]
            return o
        self.emit(hrow(0))
        a(f'''
        s_lshl_b32 s60, s12, 7
        s_lshl_b32 s61, s19, 2
        s_add_u32 s60, s60, s61
        s_add_u32 s60, s60, s39
        v_mov_b32 v15, 1
        .touch ; @r=UP
        s_mov_b64 exec, 1
        buffer_store_dword v15, v2, s[4:7], s60 offen
        s_mov_b64 exec, -1
        ''')
        self.cond('s_cmp_lg_u32 s12, 1', ['s_mov_b64 exec, 1', 'global_atomic_add v12, v15, s[92:93] offset:8 sc1', 's_mov_b64 exec, -1'])
        self.ts('upub')
        self.emit(hrow(1))
        a(f'''
        .touch ; @r=US
        s_mov_b64 exec, 1
        buffer_store_dword v15, v2, s[4:7], s60 offen offset:512 sc1
        s_mov_b64 exec, -1
        ''')
        self.ts('hcopy')

        def usync():
            P = a.label('cnt'); Q = a.label('ufl')
            a(f'''
            s_mov_b32 s61, 0
            .touch v[18:19]
            {P}:
            v_sad_u8 v15, v18, 0, 0
            v_sad_u8 v15, v19, 0, v15
            s_add_u32 s61, s61, 1
            s_cmp_gt_u32 s61, {self.spin}
            v_cmp_gt_u32 vcc, 32, v15
            s_cbranch_scc1 {P}_x
            s_cbranch_vccz {P}_x
            global_load_dwordx2 v[18:19], v12, s[92:93] sc1
            s_waitcnt vmcnt(0)
            s_branch {P}
            {P}_x:
            ''')
            self.ts('cnt')
            a(f'''
            v_readfirstlane_b32 s64, v18
            v_readfirstlane_b32 s65, v19
            s_lshr_b64 s[64:65], s[64:65], s66
            s_and_b32 s64, s64, 0xff
            s_cmp_eq_u32 s64, {999 if self.opt.get('slow') else 32}
            s_cselect_b32 s17, 1, 0
            s_cselect_b32 s64, 0, 512
            s_cselect_b32 s65, 0, 0x40000
            s_lshr_b32 s60, s19, 3
            s_lshl_b32 s60, s60, 7
            s_add_u32 s60, s60, s64
            s_add_u32 s60, s60, s39
            s_lshl_b32 s62, s19, 13
            s_add_u32 s62, s62, s65
            s_add_u32 s62, s62, s38
            s_mov_b32 s61, 0
            s_mov_b32 m0, {L_U}
            {Q}:
            buffer_load_dword v15, v2, s[4:7], s60 offen sc1
            s_add_u32 s61, s61, 1
            s_waitcnt vmcnt(0)
            v_cmp_eq_u32 vcc, 0, v15
            s_cmp_gt_u32 s61, {self.spin}
            s_cbranch_scc1 {Q}_x
            s_cmp_lg_u32 vcc_lo, 0
            s_cbranch_scc1 {Q}
            {Q}_x:
            ''')
            for c in range(2):
                if c: a(f's_mov_b32 m0, {L_U + U_}\ns_add_u32 s62, s62, 4096')
                for i in range(4):
                    a(f'buffer_load_dwordx4 v1, s[4:7], s62 offen offset:{i*1024} sc1 lds ; @w=H')
            self.ts('ufl')
            a(f'''
            v_mov_b32 v15, s17
            v_mov_b32 v22, {L_BC}
            ds_write_b32 v22, v15
            ''')
        self.cond('s_cmp_lg_u32 s12, 0', usync)
        a(f'''
        v_lshlrev_b32 v22, 3, v21
        v_add_u32 v22, v22, v20
        v_sub_u32 v22, 15, v22
        v_and_b32 v19, 1, v22
        v_lshlrev_b32 v19, 4, v19
        v_lshlrev_b32 v84, v19, v84
        v_ashrrev_i32 v22, 1, v22
        ''')
        for dd in range(4):
            a(f'v_cmp_eq_u32 vcc, {dd}, v22\nv_cndmask_b32 v{144+dd}, 0, v84, vcc')
        p = YR
        a(f'''
        v_permlane32_swap_b32 v{p}, v{p+2}
        v_permlane32_swap_b32 v{p+1}, v{p+3}
        v_permlane32_swap_b32 v{p+4}, v{p+6}
        v_permlane32_swap_b32 v{p+5}, v{p+7}
        ''')
        self.emit(self.unpack(YR, RS, 8))
        self.emit(self.sumsq(RS, 148))
        a(f's_add_u32 s63, s42, {STX}\nbuffer_store_dword v148, v1, s[4:7], s63 offen sc1')
        self.emit(self.wpoint('uw'))
        a('.touch ; @r=H\ns_waitcnt lgkmcnt(0)')
        self.ts('uwait')
        a(f's_barrier\nv_mov_b32 v22, {L_BC}\nds_read_b32 v15, v22')
        self.ts('cv0')
        CA = 48
        FA = [('v', 80), ('a', 160)]

        def loads(rr):
            c, base = FA[rr % 2]
            out = []
            for i in range(8):
                out.append(f'ds_read_b128 {vr(base+4*i,4,c)}, v7 offset:{i*512+rr*64}')
                out.append(f'ds_read_b128 {vr(base+32+4*i,4,c)}, v8 offset:{(7-i)*512+rr*64}')
            return out

        def mf(rr):
            c, base = FA[rr % 2]
            out = []
            pairs = sorted([(q, d) for q in range(8) for d in range(8) if q + d <= 7], key=lambda p: (max(p), p))
            first = set()
            for q, d in pairs:
                T = q + d
                acc = vr(CA + 4 * T)
                cin = acc
                if rr == 0 and T not in first:
                    cin = '0'; first.add(T)
                out.append(f'v_mfma_f32_16x16x32_bf16 {acc}, {vr(base+4*q,4,c)}, {vr(base+32+4*d,4,c)}, {cin}')
            return out
        self.emit(loads(0))
        a(f'''
        v_readfirstlane_b32 s17, v15
        s_lshl_b32 s60, s21, 5
        v_mov_b32 v22, s60
        v_cmp_eq_u32 vcc, 0, v23
        v_cndmask_b32 v12, v22, v12, vcc
        ''')
        self.emit(self.pretouch(XA, 0x20000, 149) + self.pretouch(STA, 0x8000, 151))
        for rr in range(4):
            side = (loads(rr + 1) if rr < 3 else []) + self.wpoint(f'cv{rr}')
            if rr == 3: side = ['global_load_dword v18, v12, s[92:93] offset:8 sc1'] + side
            self.emit(merge(mf(rr), side))
            if rr == 0:
                self.cond('s_cmp_lg_u32 s71, 0', [f'v_mfma_f32_16x16x32_bf16 {vr(CA+4*T)}, v[144:147], {vr(80+32+4*T)}, {vr(CA+4*T)}' for T in range(8)])
        self.ts('cvend')
        a(f'''
        v_add_u32 v20, s47, v1
        s_lshl_b32 s60, s12, 11
        v_add_u32 v21, s60, v1
        s_barrier
        ''')
        for T in range(8):
            a(f'ds_write_b128 v20, {vr(CA+4*T)} offset:{L_P + T*1024}')
        a('s_waitcnt lgkmcnt(0)\ns_barrier')
        for t in range(2):
            for w in range(4):
                a(f'ds_read_b128 {vr(80+16*t+4*w)}, v21 offset:{L_P + w*8192 + t*1024}')
        for t in range(2):
            b = 80 + 16 * t
            self.emit(self.add(b, b, b + 4, 4) + self.add(b + 8, b + 8, b + 12, 4))
            for j in range(4): a(f'v_cvt_pk_bf16_f32 v{b+4+j}, v{b+j}, v{b+8+j}')
            for j in range(4): a(f'v_min_u32 v{b+4+j}, -2, v{b+4+j}')
            a(f'buffer_store_dwordx4 {vr(b+4)}, v11, s[4:7], s67 offen offset:{t*1024} sc1')
        self.ts('ypub')
        self.emit(self.wpoint('yw'))
        if not self.sched.get('cslate'): self.colsum1()
        if not self.sched.get('ya'): self.setup_lanes()
        P = a.label('ycnt'); Q = a.label('ypoll')
        a(f'''
        s_mov_b32 s61, 0
        v_lshlrev_b32 v20, 14, v23
        v_lshl_add_u32 v20, v16, 2, v20
        .touch v18
        {P}:
        v_cmp_gt_u32 vcc, 32, v18
        s_add_u32 s61, s61, 1
        s_cmp_gt_u32 s61, {self.spin}
        s_cbranch_scc1 {P}_x
        s_cbranch_vccz {P}_x
        ''')
        a(f'''s_lshl_b32 s60, s21, 5
        s_lshl_b32 s62, s18, 5
        v_mov_b32 v21, s60
        v_mov_b32 v22, s62
        v_cmp_eq_u32 vcc, 0, v23
        v_cndmask_b32 v21, v21, v22, vcc
        global_load_dword v18, v21, s[92:93] offset:8 sc1
        s_waitcnt vmcnt(0)
        s_branch {P}''', tag='nocount')
        a(f'''
        {P}_x:
        s_mov_b32 s61, 0
        {Q}:
        s_mov_b32 s62, s34
        ''')
        for i in range(8):
            a(f'buffer_load_dword v{YR+i}, v20, s[4:7], s62 offen sc1')
            if i < 7: a(f's_add_u32 s62, s62, {8192 if i % 2 == 0 else 3*8192}')
        a('s_add_u32 s61, s61, 1\ns_waitcnt vmcnt(0)')
        self.emit(self.maxchain(15, list(range(YR, YR + 8))))
        a(f'''
        s_cmp_gt_u32 s61, {self.spin}
        v_cmp_eq_u32 vcc, -1, v15
        s_cbranch_scc1 {Q}_x
        s_cbranch_vccz {Q}_x
        s_sleep {self.opt.get('ysleep', 2)}
        s_branch {Q}
        {Q}_x:
        ''')
        self.ts('yarr')
        self.emit(self.wpoint('ya'))
        if self.sched.get('cslate'): self.colsum1()
        if self.sched.get('ya'): self.setup_lanes()
        a('s_waitcnt lgkmcnt(0)')

    def colsum1(self):
        a = self.a
        T = XR
        for i in range(4): a(f'v_mov_b32 v{T+i}, 0x3f803f80')
        for ks in range(8):
            for sl in range(2):
                c = vr(ACC + 16 * sl, 16)
                a(f'v_mfma_f32_32x32x16_bf16 {c}, {wfrag(1, ks, sl)}, {vr(T)}, {c if ks else 0}')
        a(f'''
        v_lshrrev_b32 v20, 5, v17
        v_lshlrev_b32 v20, 4, v20
        s_lshl_b32 s60, s12, 8
        s_lshl_b32 s61, s71, 7
        s_add_u32 s60, s60, s61
        s_add_u32 s60, s60, {L_CS1}
        v_add_u32 v20, s60, v20
        v_xor_b32 v21, 0x80, v20
        ''')
        for sl in range(2):
            for g in range(4):
                a(f'ds_write_b128 v{20+sl}, {vr(ACC+16*sl+4*g)} offset:{g*32}')

    def setup_layers(self):
        self.a(f'''
        s_add_u32 s37, s15, {FL}
        s_lshl_b32 s45, s13, 4
        s_lshl_b32 s60, s12, 2
        s_add_u32 s45, s45, s60
        s_add_u32 s45, s45, s37
        s_lshl_b32 s41, s51, 11
        s_lshl_b32 s40, s44, 15
        s_add_u32 s40, s40, s15
        s_lshl_b32 s43, s44, 12
        s_add_u32 s43, s43, s15
        s_lshr_b32 s60, s51, 2
        s_lshl_b32 s60, s60, 10
        s_and_b32 s61, s51, 3
        s_lshl_b32 s61, s61, 2
        s_add_u32 s42, s43, s60
        s_add_u32 s42, s42, s61
        v_lshrrev_b32 v18, 2, v17
        v_bfe_u32 v19, v17, 1, 1
        v_cmp_eq_u32 s[64:65], s13, v18
        v_cmp_eq_u32 s[22:23], s20, v23
        v_lshl_add_u32 v20, v23, 1, v19
        v_cmp_eq_u32 s[26:27], s12, v20
        v_bfe_u32 v20, v17, 3, 2
        v_cmp_eq_u32 s[24:25], s12, v20
        v_lshrrev_b32 v20, 4, v17
        v_cmp_eq_u32 s[28:29], s12, v20
        v_cmp_eq_u32 s[68:69], s20, v19
        s_nop 1
        s_and_b64 s[28:29], s[28:29], s[68:69]
        s_or_b64 s[24:25], s[24:25], s[64:65]
        s_or_b64 s[26:27], s[26:27], s[64:65]
        s_or_b64 s[28:29], s[28:29], s[64:65]
        ''')

    def setup_lanes(self):
        a = self.a

        def delta(q, d):
            return f'''
            s_lshr_b32 {d}, {q}, 1
            s_add_u32 {d}, {d}, 1
            s_sub_u32 s63, 0, {d}
            s_bitcmp1_b32 {q}, 0
            s_cselect_b32 {d}, s63, {d}
            '''
        a(f'''
        s_lshr_b32 s64, s21, 1
        {delta('s64', 's62')}
        s_lshl_b32 s63, s44, 5
        s_add_u32 s63, s63, s62
        v_add_u32 v20, s63, v16
        v_ashrrev_i32 v21, 5, v20
        v_lshlrev_b32 v21, 15, v21
        v_and_b32 v22, 31, v20
        v_lshl_add_u32 v21, v22, 4, v21
        v_lshl_add_u32 v21, v23, 9, v21
        s_add_u32 s63, s15, {HS}
        v_add_u32 v21, s63, v21
        v_mov_b32 v18, {OOB}
        v_cmp_gt_u32 vcc, 0x80, v20
        v_ashrrev_i32 v22, 7, v20
        v_cndmask_b32 v3, v18, v21, vcc
        v_add_u32 v22, s14, v22
        v_and_b32 v21, 1, v20
        v_lshlrev_b32 v21, 4, v21
        v_lshl_add_u32 v21, v23, 5, v21
        v_lshl_add_u32 v21, v22, 20, v21
        v_add_u32 v21, {SG0 + SH}, v21
        v_cndmask_b32 v21, v21, v18, vcc
        v_cmp_gt_u32 vcc, 16, v22
        v_cndmask_b32 v4, v18, v21, vcc
        {delta('s12', 's62')}
        v_and_b32 v22, 1, v16
        v_lshlrev_b32 v22, 4, v22
        v_lshl_add_u32 v22, v23, 5, v22
        v_add_u32 v22, {SH}, v22
        ''')
        for h, (vd, sm) in enumerate(((5, 30), (6, 32))):
            a(f'''
            s_xor_b32 s64, s44, {1 - h}
            s_lshl_b32 s65, s64, 5
            s_sub_u32 s65, s65, s62
            v_add_u32 v20, s65, v16
            v_cmp_le_u32 vcc, 0x80, v20
            s_lshl_b32 s64, s64, 15
            s_add_u32 s64, s64, {HS}
            v_add_u32 v21, s64, v1
            s_mov_b64 s[{sm}:{sm+1}], vcc
            v_cndmask_b32 v{vd}, v21, v22, vcc
            ''')
        a(f'''
        v_and_b32 v20, 15, v17          ; m16
        v_bfe_u32 v22, v17, 4, 1
        v_lshlrev_b32 v7, 14, v22
        v_lshl_add_u32 v7, v23, 8, v7
        v_lshl_add_u32 v7, v20, 4, v7
        v_lshlrev_b32 v8, 9, v22
        v_lshl_add_u32 v8, v23, 8, v8
        v_lshl_add_u32 v8, v20, 4, v8
        s_add_u32 s60, s47, {L_RED}
        v_add_u32 v10, s60, v1
        s_xor_b32 s60, s47, 0x4000
        s_add_u32 s60, s60, {L_RED}
        v_add_u32 v12, s60, v1
        s_xor_b32 s60, s47, 0x2000
        s_add_u32 s60, s60, {L_RED}
        v_add_u32 v13, s60, v1
        v_lshlrev_b32 v11, 2, v22
        v_lshl_add_u32 v11, v23, 4, v11
        v_bfe_u32 v21, v17, 2, 2
        v_add_u32 v11, v11, v21
        v_mul_u32_u24 v11, 224, v11
        v_and_b32 v21, 3, v17
        v_lshl_add_u32 v11, v21, 3, v11
        v_add_u32 v0, 57344, v11
        v_and_b32 v14, 48, v17
        v_add_u32 v14, {L_CS3}, v14
        ''')

    def p0(self):
        a = self.a
        T = XR
        self.ts('p0')
        self.emit(self.unpack(YR, ACC, 8))
        P = a.label('stx')
        a(f'''
        s_add_u32 s62, s43, {STX + 16384 * self.l}
        s_mov_b32 s61, 0
        {P}:
        ''')
        for i in range(4): a(f'buffer_load_dwordx4 {vr(T+4*i)}, v1, s[4:7], s62 offen offset:{i*1024} sc1')
        a('s_add_u32 s61, s61, 1\ns_waitcnt vmcnt(0)')
        self.emit(self.maxchain(15, list(range(T, T + 16))))
        a(f'''
        s_cmp_gt_u32 s61, {self.spin}
        v_cmp_eq_u32 vcc, -1, v15
        s_cbranch_scc1 {P}_x
        s_cbranch_vccnz {P}
        {P}_x:
        ''')
        self.ts('p0_st')
        self.emit(self.redstats(T))
        a(f'v_mul_f32 v{T+3}, v{T}, v{T+2}')
        U = ACC + 16
        self.emit([f'v_pk_fma_f32 {vr(U+i,2)}, {vr(RS+i,2)}, {vr(T+2,2)}, {vr(T+2,2)} op_sel:[0,0,1] op_sel_hi:[1,0,1] neg_lo:[0,0,1] neg_hi:[0,0,1]' for i in range(0, 16, 2)])
        self.emit([f'v_pk_fma_f32 {vr(RS+i,2)}, {vr(U+i,2)}, {vr(ACC+i,2)}, {vr(RS+i,2)}' for i in range(0, 16, 2)])
        self.emit([f'v_cvt_pk_bf16_f32 v{U+i}, v{RS+2*i}, v{RS+2*i+1}' for i in range(8)])
        a(f's_add_u32 s62, s40, s41\ns_add_u32 s63, s42, {STA}')
        self.stores([f'buffer_store_dwordx4 {vr(U)}, v1, s[4:7], s62 offen',
                     f'buffer_store_dwordx4 {vr(U+4)}, v1, s[4:7], s62 offen offset:1024'], 'ST')
        self.emit(self.sumsq(RS, T + 4))
        self.stores([f'buffer_store_dword v{T+4}, v1, s[4:7], s63 offen'], 'ST')
        self.publish(1)
        self.ts('p0_pub')

    def gemm(self, mat, seq, load, extra_after=None):
        pro = []
        for i in range(min(NRING, len(seq))): pro += load(i, vr(XR + 4 * i))
        seen = set()
        steps = []
        for i, (h, ks) in enumerate(seq):
            o = []
            x = vr(XR + 4 * (i % NRING))
            for sl in range(2):
                blk = sl if h == 0 else 3 - sl
                c = vr(ACC + 16 * blk, 16)
                o.append(f'v_mfma_f32_32x32x16_bf16 {c}, {wfrag(mat, ks, sl)}, {x}, {c if blk in seen else 0}')
                seen.add(blk)
            if i + NRING < len(seq): o += load(i + NRING, x)
            steps.append(o)
        return pro, steps

    def g1(self):
        a = self.a
        self.poll('s[22:23]', 1)
        self.ts('g1_poll')
        a(f'''
        s_add_u32 s65, s40, s47
        s_xor_b32 s64, s65, 0x8000
        s_add_u32 s66, s64, 4096
        s_add_u32 s67, s65, 4096
        s_add_u32 s68, s43, {STA}
        ''')
        seq = [(h, ks) for h in range(2) for ks in range(8)]
        pro, st = self.gemm(1, seq, lambda i, d: [f'buffer_load_dwordx4 {d}, v1, s[4:7], s{64 + seq[i][0] + 2*(seq[i][1]//4)} offen offset:{(seq[i][1]%4)*1024} sc1'])
        self.emit(pro)
        S = XR + 16
        for i in range(8):
            self.emit(st[i])
            if i >= 4: a(f'buffer_load_dwordx4 {vr(S+4*(i-4))}, v1, s[4:7], s68 offen offset:{(i-4)*1024} sc1')
        self.emit(self.pretouch(HS, 0x20000, 19))
        if self.l == 0 and self.sched.get('w3a'): self.emit(self.w3_issue(*self.sched['w3a'], 15))
        main = sum(st[8:], [])
        side = ['s_nop 0'] * 2 + self.xchg1() + ['s_nop 0'] * 4 + self.add(ACC, ACC, ACC + 16, 16, False)
        self.emit(merge(main, side, ratio=4))
        self.ts('g1_main')
        x2 = self.xchg2()
        self.emit(x2[:4])
        a(f'v_lshrrev_b32 v15, 9, v1\nv_lshlrev_b32 v15, 4, v15\ns_lshl_b32 s60, s71, 7\ns_add_u32 s60, s60, {L_CS1}\nv_add_u32 v15, s60, v15')
        C = [ACC + 16, XR + 32, XR]
        for p in range(3):
            for g in range(4): a(f'ds_read_b128 {vr(C[p]+4*g)}, v15 offset:{p*256+g*32}')
        self.emit(self.redstats(S))
        a(f'''
        v_mov_b32 v16, v{S+2}
        v_mul_f32 v17, v{S}, v{S+2}
        v_mul_f32 v18, v{S+2}, v{S+2}
        v_mov_b32 v19, {hex(f2u(1e-5))}
        v_fma_f32 v18, v18, v{S+1}, v19
        v_rsq_f32 v18, v18
        v_sub_f32 v17, 0, v17
        v_sub_f32 v22, 0, v{S}
        v_mul_f32 v18, v18, v{S+2}
        ''')
        for g in range(4): a(f'ds_read_b128 {vr(S+4*g)}, v15 offset:{3*256+g*32}')
        self.emit(x2[4:])
        self.emit(self.gelu_consts(18, 20, 23))
        self.emit(self.add(C[0], C[0], C[1]) + self.add(C[2], C[2], S) + self.add(C[0], C[0], C[2]))
        self.emit(self.add(ACC, ACC, ACC + 48))
        self.emit([f'v_pk_fma_f32 {vr(ACC+i,2)}, {vr(C[0]+i,2)}, v[22:23], {vr(ACC+i,2)} op_sel_hi:[1,0,1]' for i in range(0, 16, 2)])
        self.emit(self.add(ACC, ACC, ACC + 32))
        self.emit(self.gelu([(ACC + 2 * i, 20, 23, ACC + 16 + i) for i in range(8)], XR))
        self.emit([f'v_min_u32 v{ACC+16+i}, -2, v{ACC+16+i}' for i in range(8)])
        a(f'buffer_store_dwordx4 {vr(ACC+16)}, v4, s[4:7], s41 offen sc1')
        a(f'buffer_store_dwordx4 {vr(ACC+20)}, v4, s[4:7], s41 offen offset:1024 sc1')
        self.stores([f'buffer_store_dwordx4 {vr(ACC+16)}, v3, s[4:7], s41 offen',
                     f'buffer_store_dwordx4 {vr(ACC+20)}, v3, s[4:7], s41 offen offset:1024'], 'ST')
        self.ts('g1_st')
        self.publish(2)

    def g2(self):
        a = self.a
        self.poll('s[24:25]', 2)
        self.ts('g2_poll')
        a('s_add_u32 s64, s15, s47\ns_add_u32 s65, s64, 4096')
        seq = [(h, ks) for h in range(2) for ks in range(8)]

        def ld(i, d):
            h, ks = seq[i]
            return [f'buffer_load_dwordx4 {d}, v{5+h}, s[4:7], s{64 + ks//4} offen offset:{(ks%4)*1024} sc1']
        pro, st = self.gemm(2, seq, ld)
        self.emit(pro)

        def shadow_check(h):
            sm = f's[{30+2*h}:{31+2*h}]'
            idx = range(8 * h, 8 * h + 8)
            regs = [XR + 4 * (i % NRING) for i in idx]

            def body():
                L = a.label('shchk')
                a(f's_mov_b32 s61, 0\n.touch v{regs[-1]}\n{L}:')
                self.emit(self.maxchain(15, regs))
                a(f'''
                s_add_u32 s61, s61, 1
                v_cmp_eq_u32 vcc, -1, v15
                s_cmp_gt_u32 s61, {self.spin}
                s_cbranch_scc1 {L}_x
                s_and_b64 vcc, vcc, {sm}
                s_cbranch_scc0 {L}_x
                s_mov_b64 exec, {sm}''')
                for i in idx: self.emit(ld(i, vr(XR + 4 * (i % NRING))))
                a(f's_mov_b64 exec, -1\ns_waitcnt vmcnt(0)\ns_branch {L}\n{L}_x:')
            self.cond(f's_cmp_eq_u64 {sm}, 0', body)
        shadow_check(0)
        for i in range(8):
            self.emit(st[i])
            if i == 3: self.emit(self.pretouch(X1, 0x20000, 19))
            if i == 3 and self.l == 0 and self.sched.get('w3b'): self.emit(self.w3_issue(*self.sched['w3b'], 15))
        shadow_check(1)
        T = XR + 16
        main = sum(st[8:], [])
        side = ['s_nop 0'] * 2 + self.xchg1()
        side += [f'v_fma_f32 v{T+i}, v{RS+i}, v16, v17' for i in range(16)]
        side += self.add(ACC, ACC, ACC + 16, 16, False) + self.add(ACC, ACC, T, 16, False)
        self.emit(merge(main, side, ratio=5))
        self.ts('g2_main')
        self.emit(self.xchg2())
        self.emit(self.add(ACC, ACC, ACC + 48) + self.add(ACC, ACC, ACC + 32))
        self.emit([f'v_cvt_pk_bf16_f32 v{ACC+16+i}, v{ACC+2*i}, v{ACC+2*i+1}' for i in range(8)])
        a(f'''
        s_lshr_b32 s62, s41, 1
        s_add_u32 s62, s62, s40
        s_add_u32 s62, s62, {X1}
        s_add_u32 s63, s42, {ST1}
        ''')
        self.stores([f'buffer_store_dwordx4 {vr(ACC+16)}, v7, s[4:7], s62 offen',
                     f'buffer_store_dwordx4 {vr(ACC+20)}, v7, s[4:7], s62 offen offset:512'], 'ST')
        self.emit(self.sumsq(ACC, T))
        self.stores([f'buffer_store_dword v{T}, v1, s[4:7], s63 offen'], 'ST')
        self.emit(self.add(RS, RS, ACC))
        self.ts('g2_st')
        self.publish(3)
        cs = ['s_barrier'] + [f'v_mov_b32 v{ACC+i}, 0x3f803f80' for i in range(4)]
        cs += ['s_lshl_b32 s62, s12, 6', 's_add_u32 s63, s62, 32', 's_min_u32 s63, s63, 192']
        B = ACC + 16
        for n, s in enumerate(('s62', 's63')):
            cs += [f'v_add_u32 v20, {s}, v11', f'v_add_u32 v21, {s}, v0']
            c = vr(ACC + 4 + 4 * n)
            for ks in range(16):
                for j in range(2):
                    cs.append(f'ds_read_b64_tr_b16 {vr(B+4*ks+2*j,2)}, v{20+ks//8} offset:{(ks%8)*7168+j*1792}')
            cs += [f'v_mfma_f32_16x16x32_bf16 {c}, {vr(B+4*ks)}, {vr(ACC)}, {c if ks else 0}' for ks in range(16)]
        for n, s in enumerate(('s62', 's63')):
            cs += [f's_lshl_b32 s64, {s}, 1', 'v_add_u32 v20, s64, v14', f'ds_write_b128 v20, {vr(ACC+4+4*n)}']
        cs += ['s_waitcnt lgkmcnt(0)', 's_barrier']
        if self.l == 0: self.emit(['.touch ; @r=W3'] + cs)

    def g3(self):
        a = self.a
        NX, NWB = 8, 6
        X, WB = XR + 16, XR - 8
        seq = [(ks, nb) for ks in range(16) for nb in range(7)]

        def wread(i):
            ks, nb = seq[i]
            return [f'ds_read_b64_tr_b16 {vr(WB+4*(i%NWB)+2*j,2)}, {"v11" if ks < 8 else "v0"} offset:{(ks%8)*7168+j*1792+nb*32}' for j in range(2)]
        for i in range(NWB): self.emit(wread(i))
        a(f'''
        s_lshl_b32 s64, s12, 15
        s_add_u32 s64, s64, s15
        s_add_u32 s64, s64, {X1}
        s_add_u32 s65, s64, 16384
        s_lshl_b32 s68, s12, 12
        s_add_u32 s68, s68, s15
        s_add_u32 s68, s68, {ST1}
        s_mul_i32 s66, s12, 114688
        s_mul_i32 s62, s13, 7168
        s_add_u32 s66, s66, s62
        s_add_u32 s66, s66, s15
        s_add_u32 s66, s66, {H2}
        s_add_u32 s67, s66, 4096
        ''')
        self.poll('s[26:27]', 3)
        self.ts('g3_poll')

        def xload(ks):
            o = ['s_add_u32 s64, s64, 4096', 's_add_u32 s65, s65, 4096'] if ks and ks % 4 == 0 else []
            return o + [f'buffer_load_dwordx4 {vr(X+((2*ks+mb)%NX)*4)}, v1, s[4:7], s{64+mb} offen offset:{(ks%4)*1024} sc1' for mb in range(2)]
        for ks in range(NX // 2): self.emit(xload(ks))
        S = X
        for i, (ks, nb) in enumerate(seq):
            for mb in range(2):
                c = vr(ACC + (nb * 2 + mb) * 4)
                a(f'v_mfma_f32_16x16x32_bf16 {c}, {vr(WB+4*(i%NWB))}, {vr(X+((2*ks+mb)%NX)*4)}, {c if ks else 0}')
            if i + NWB < len(seq): self.emit(wread(i + NWB))
            else: a(f'ds_read_b128 {vr(WB+4*(i%NWB))}, v14 offset:{(i + NWB - len(seq))*64}')
            if nb == 6:
                if ks + NX // 2 < 16: self.emit(xload(ks + NX // 2))
                elif ks < 14:
                    for j in range(2): a(f'buffer_load_dwordx4 {vr(S+8*(ks-12)+4*j)}, v1, s[4:7], s68 offen offset:{(2*(ks-12)+j)*1024} sc1')
                    if ks == 13: self.emit(self.pretouch(H2, 0x70000, 15))
        self.ts('g3_main')
        csr = [WB + 4 * ((len(seq) - NWB + n) % NWB) for n in range(6)] + [X + 16]
        a(f'ds_read_b128 {vr(X+16)}, v14 offset:{6*64}')
        self.emit(self.redstats(S))
        self.emit(self.gelu_consts(S + 2, 16, 19))
        a(f'''
        v_sub_f32 v18, 0, v{S}
        v_mov_b32 v20, v16
        v_mov_b32 v21, v17
        v_mov_b32 v22, v18
        v_mov_b32 v23, v19
        v_permlane16_swap_b32 v16, v20
        v_permlane16_swap_b32 v17, v21
        v_permlane16_swap_b32 v18, v22
        v_permlane16_swap_b32 v19, v23
        ''')
        for nb in range(7):
            c = ACC + nb * 8
            for mb in range(2):
                for i in range(2):
                    r = c + 4 * mb + 2 * i
                    a(f'v_pk_fma_f32 {vr(r,2)}, {vr(csr[nb]+2*i,2)}, {vr(18+4*mb,2)}, {vr(r,2)} op_sel_hi:[1,0,1]')
            self.emit(self.gelu([(c + 2 * i, 16 + 4 * (i // 2), 19 + 4 * (i // 2), c + i) for i in range(4)], S + 8 * (nb % 2)))
            a(f'v_permlane32_swap_b32 v{c}, v{c+2}\nv_permlane32_swap_b32 v{c+1}, v{c+3}')
            self.stores([f'buffer_store_dwordx4 {vr(c)}, v8, s[4:7], s{66 + nb//4} offen offset:{(nb%4)*1024}'], 'ST')
        self.ts('g3_st')
        self.publish(4)

    def g4(self):
        a = self.a
        a(f'''
        s_mul_i32 s64, s12, 28672
        s_add_u32 s64, s64, s15
        s_add_u32 s64, s64, {H2}
        s_xor_b32 s62, s44, 1
        s_mul_i32 s62, s62, 114688
        s_add_u32 s68, s62, s64
        s_mul_i32 s63, s44, 114688
        s_add_u32 s69, s63, s64
        ''')
        self.poll('s[28:29]', 4)
        self.ts('g4_poll')
        seq = [(h, ks) for h in range(2) for ks in range(28)]

        def ld(i, d):
            h, ks = seq[i]
            o = [f's_add_u32 s{68+h}, s{68+h}, 4096'] if ks and ks % 4 == 0 else []
            return o + [f'buffer_load_dwordx4 {d}, v1, s[4:7], s{68+h} offen offset:{(ks%4)*1024} sc1']
        pro, st = self.gemm(4, seq, ld)
        self.emit(pro)
        self.emit(sum(st[:28], []))
        side = ['s_nop 0'] * 2 + self.xchg1() + ['s_nop 0'] * 6 + self.add(RS, RS, ACC, 16, False) + self.add(RS, RS, ACC + 16, 16, False)
        self.emit(merge(sum(st[28:], []), side, ratio=2))
        self.ts('g4_main')
        self.emit(self.xchg2())
        self.emit(self.add(RS, RS, ACC + 48) + self.add(RS, RS, ACC + 32))
        if self.l + 1 < self.opt.get('nl', 2):
            self.emit(self.sumsq(RS, XR))
            a(f's_add_u32 s63, s42, {STX + 16384}')
            self.stores([f'buffer_store_dword v{XR}, v1, s[4:7], s63 offen'], 'ST')
            a(f'''
            v_add_u32 v4, 64, v4
            v_cndmask_b32 v15, 0, 64, s[30:31]
            v_add_u32 v5, v5, v15
            v_cndmask_b32 v15, 0, 64, s[32:33]
            v_add_u32 v6, v6, v15
            ''')
            return
        p = ACC
        self.emit([f'v_cvt_pk_bf16_f32 v{p+i}, v{RS+2*i}, v{RS+2*i+1}' for i in range(8)])
        a(f'''
        v_bfe_u32 v20, v1, 4, 5
        v_lshlrev_b32 v20, 10, v20
        v_lshrrev_b32 v21, 9, v1
        v_lshl_add_u32 v20, v21, 4, v20
        v_permlane32_swap_b32 v{p}, v{p+2}
        v_permlane32_swap_b32 v{p+1}, v{p+3}
        v_permlane32_swap_b32 v{p+4}, v{p+6}
        v_permlane32_swap_b32 v{p+5}, v{p+7}
        buffer_store_dwordx4 {vr(p)}, v20, s[8:11], s35 offen
        buffer_store_dwordx4 {vr(p+4)}, v20, s[8:11], s35 offen offset:32
        ''')
        if self.opt.get('ts'):
            self.l = None
            a('s_waitcnt vmcnt(0)')
            self.ts('end')
            self.ts('rt_end', True)
            a(f'''
            s_lshl_b32 s60, s2, 10
            s_lshl_b32 s61, s12, 8
            s_add_u32 s60, s60, s61
            s_add_u32 s60, s60, {TS}
            buffer_store_dword v9, v2, s[4:7], s60 offen
            ''')
```

```python
YB = 0x0
SG0 = 0x200000
SGS = 0x100000
XA = 0x0
HS = 0x20000
X1 = 0x40000
H2 = 0x60000
STA = 0xD0000
ST1 = 0xD4000
STX = 0xD8000
SH = 0xE0000
FL = 0xF0000
UFL = 0xF0100
UR0 = 0x1200000
TS = 0x1800000
WS_BYTES = 268435456
OOB = 0x80000000
```
